```python
import torch

def _softmax(x, axis=-1):
    return torch.softmax(x, dim=axis)
def _gelu(x):
    return torch.nn.functional.gelu(x, approximate="tanh")
def _silu(x):
    return torch.nn.functional.silu(x)
def _sigmoid(x):
    return torch.sigmoid(x)
def _layernorm(x, axis=-1, eps=1e-5):
    m = x.mean(dim=axis, keepdim=True)
    v = x.var(dim=axis, keepdim=True, unbiased=False)
    return (x - m) / torch.sqrt(v + eps)
def _scatter_add(tgt, idx, src, axis=0):
    return tgt.clone().index_add_(axis, idx, src)
def _segment_sum(src, seg, n):
    out = torch.zeros((n,) + src.shape[1:], dtype=src.dtype)
    return out.index_add_(0, seg, src)
def _pad(x, pw):
    flat = tuple(v for pair in reversed(pw) for v in pair)
    return torch.nn.functional.pad(x, flat)

kernel_name = 'recurrent_scan__linear_attn_block__glu_gated_geglu__prompt'

def setup_inputs():

    _w = (lambda a: (lambda t: t.to(torch.bfloat16) if t.is_floating_point() else t)(torch.as_tensor(a)))
    def _A_setup():
        B, S, D = 1, 2048, 512
        return {
            "x": _w((lambda *s: torch.randn(*s, dtype=torch.bfloat16) * 0.05)(B, S, D)),
            "wqkv": _w((lambda *s: torch.randn(*s, dtype=torch.bfloat16) * 0.8)(D, 3 * D)),
            "wo": _w((lambda *s: torch.randn(*s, dtype=torch.bfloat16) * 0.8)(D, D)),
        }
    _A_in = _A_setup()

    def _B_setup():
        B, S, Dm, Df = 1, 2048, 512, 1792
        return {
            "x": _w((lambda *s: torch.randn(*s, dtype=torch.bfloat16) * 0.05)(B, S, Dm)),
            "w_gate": _w((lambda *s: torch.randn(*s, dtype=torch.bfloat16) * 0.2)(Dm, Df) * (Dm ** -0.5)),
            "w_up": _w((lambda *s: torch.randn(*s, dtype=torch.bfloat16) * 0.2)(Dm, Df) * (Dm ** -0.5)),
            "w_down": _w((lambda *s: torch.randn(*s, dtype=torch.bfloat16) * 0.2)(Df, Dm) * (Df ** -0.5)),
        }
    _B_in = _B_setup()

    return {
        "A_x": _A_in["x"],
        "A_wqkv": _A_in["wqkv"],
        "A_wo": _A_in["wo"],
        "B_x": _B_in["x"],
        "B_w_gate": _B_in["w_gate"],
        "B_w_up": _B_in["w_up"],
        "B_w_down": _B_in["w_down"],
    }

def reference(A_x, A_wqkv, A_wo, B_x, B_w_gate, B_w_up, B_w_down):
    def _A_ref(x, wqkv, wo):
        B, S, D = x.shape
        H = 32; Dh = D // H
        qkv = (lambda x, *d: x.permute(*d))((x @ wqkv).reshape(B, S, 3, H, Dh), 2, 0, 3, 1, 4)
        q, k, v = qkv[0], qkv[1], qkv[2]
        phi = lambda t: torch.where(t > 0, t + 1, torch.exp(t)) + 1e-6
        pq, pk = phi(q), phi(k)
        kv = torch.einsum("bhsd,bhse->bhde", pk, v)
        z = torch.einsum("bhsd->bhd", pk)
        num = torch.einsum("bhqd,bhde->bhqe", pq, kv)
        den = torch.einsum("bhqd,bhd->bhq", pq, z)[..., None] + 1e-6
        o = num / den
        return (lambda x, *d: x.permute(*d))(o, 0, 2, 1, 3).reshape(B, S, D) @ wo

    def _B_ref(x, w_gate, w_up, w_down):
        g = torch.einsum("bsd,df->bsf", x, w_gate)
        u = torch.einsum("bsd,df->bsf", x, w_up)
        h = _gelu(g) * u
        return torch.einsum("bsf,fd->bsd", h, w_down)

    x = A_x
    xn = _layernorm(x, axis=-1)
    s = _A_ref(xn, A_wqkv, A_wo)
    g = _silu(_B_ref(xn, B_w_gate, B_w_up, B_w_down))
    return x + s * g
```

```python
import re

REG_RE = re.compile(r'^(-|\|)?([vsa])(\d+)\|?$')
RNG_RE = re.compile(r'^([vsa])\[(\d+):(\d+)\]$')

def regs_of(op):
    op = op.strip()
    if op.startswith('-'):
        op = op[1:]
    if op.startswith('abs(') and op.endswith(')'):
        op = op[4:-1]
    if op.startswith('|') and op.endswith('|'):
        op = op[1:-1]
    m = RNG_RE.match(op)
    if m:
        return [m.group(1) + str(i) for i in range(int(m.group(2)), int(m.group(3)) + 1)]
    m = re.match(r'^([vsa])(\d+)$', op)
    if m:
        return [op]
    if op == 'vcc':
        return ['vcc']
    if op == 'exec':
        return ['exec']
    if op == 'm0':
        return ['m0']
    if op == 'scc':
        return ['scc']
    return []

def vr(a, n=1):
    return 'v%d' % a if n == 1 else 'v[%d:%d]' % (a, a + n - 1)
def sr(a, n=1):
    return 's%d' % a if n == 1 else 's[%d:%d]' % (a, a + n - 1)

TRANS = ('v_exp_f32', 'v_log_f32', 'v_rcp_f32', 'v_rsq_f32', 'v_sqrt_f32', 'v_sin_f32', 'v_cos_f32')

class Op:
    __slots__ = ('text', 'kind', 'rd', 'wr', 'tag', 'passes', 'cread')
    def __init__(s, text, kind, rd, wr, tag=None, passes=0, cread=()):
        s.text = text; s.kind = kind; s.rd = rd; s.wr = wr; s.tag = tag; s.passes = passes; s.cread = cread

def mkop(mn, *ops, mods='', tag=None):
    ops = [str(o) for o in ops]
    text = mn + ' ' + ', '.join(ops) + ((' ' + mods) if mods else '')
    R = lambda lst: [r for o in lst for r in regs_of(o)]
    if mn.startswith('v_mfma'):
        passes = 8 if '32x32' in mn else 4
        return Op(text, 'mfma', R(ops[1:]), R(ops[:1]), tag, passes, cread=R(ops[3:4]))
    if mn.startswith('v_cmp'):
        return Op(text, 'valu', R(ops[1:]), R(ops[:1]), tag)
    if mn.startswith('v_permlane'):
        return Op(text, 'perm', R(ops), R(ops), tag)
    if mn.startswith('v_readfirstlane') or mn.startswith('v_readlane'):
        return Op(text, 'readlane', R(ops[1:]), R(ops[:1]), tag)
    if mn.startswith('v_'):
        rd = R(ops[1:])
        if mn.startswith('v_fmac') or mn.startswith('v_dot2c') or mn in ('v_pk_fmac_f16',):
            rd = rd + R(ops[:1])
        if mn.startswith('v_cndmask') and len(ops) == 3:
            rd = rd + ['vcc']
        wr = R(ops[:1])
        if mn in ('v_add_co_u32', 'v_sub_co_u32', 'v_addc_co_u32'):
            wr = R(ops[:2]); rd = R(ops[2:])
        kind = 'trans' if any(mn.startswith(t) for t in TRANS) else 'valu'
        if '_dpp' in mn or 'row_' in mods or 'quad_perm' in mods:
            kind = 'dpp'
        return Op(text, kind, rd, wr, tag)
    if mn.startswith('ds_read'):
        return Op(text, 'ds_read', R(ops[1:]), R(ops[:1]), tag)
    if mn.startswith('ds_write') or mn.startswith('ds_add'):
        return Op(text, 'ds_write', R(ops), [], tag)
    if mn.startswith('buffer_load') and ' lds' in (' ' + mods):
        return Op(text, 'dma', R(ops) + ['m0'], [], tag)
    if mn.startswith('buffer_load') or mn.startswith('global_load'):
        return Op(text, 'vm_load', R(ops[1:]), R(ops[:1]), tag)
    if mn.startswith('buffer_store') or mn.startswith('global_store'):
        return Op(text, 'vm_store', R(ops), [], tag)
    if mn.startswith('buffer_atomic') or mn.startswith('global_atomic'):
        if 'sc0' in mods:
            return Op(text, 'vm_load', R(ops[1:]), R(ops[:1]), tag)
        return Op(text, 'vm_store', R(ops), [], tag)
    if mn.startswith('s_load') or mn.startswith('s_memtime') or mn.startswith('s_memrealtime'):
        return Op(text, 'smem', R(ops[1:]), R(ops[:1]), tag)
    if mn.startswith('s_cmp') or mn.startswith('s_bitcmp'):
        return Op(text, 'salu', R(ops), ['scc'], tag)
    if mn in ('s_barrier', 's_setprio', 's_sleep', 's_nop', 's_endpgm') or mn.startswith('s_cbranch') or mn == 's_branch' or mn == 's_waitcnt':
        return Op(text, 'ctl', [], [], tag)
    if mn.startswith('s_'):
        rd = R(ops[1:])
        wr = R(ops[:1])
        if mn.startswith('s_cselect') or mn.startswith('s_addc') or mn.startswith('s_subb'):
            rd = rd + ['scc']
        if 'saveexec' in mn:
            rd = rd + ['exec']; wr = wr + ['exec']
        return Op(text, 'salu', rd, wr + ['scc'], tag)
    raise ValueError('unknown mnemonic ' + mn)

class Asm:
    def __init__(s):
        s.out = []
        s.pos = 0
        s.reset_state()
        s.nops = 0
        s.ninst = 0
    def reset_state(s):
        s.vm_issued = 0; s.vm_retired = 0
        s.lg_issued = 0; s.lg_retired = 0
        s.pend = {}
        s.tags = {}
        s.w_valu = {}; s.w_trans = {}; s.w_mfma = {}; s.r_mfmac = {}; s.w_vsgpr = {}; s.st_data = {}; s.w_m0 = -100
        s.w_salu = {}
    def raw(s, line):
        s.out.append(line)
    def label(s, name):
        s.out.append(name + ':')
    def comment(s, t):
        s.out.append('; ' + t)
    def _emit(s, text):
        s.out.append('  ' + text); s.pos += 1; s.ninst += 1
    def nop(s, n):
        while n > 0:
            k = min(n, 16)
            s.out.append('  s_nop %d' % (k - 1)); s.pos += k; n -= k; s.nops += 1; s.ninst += 1
    def waitcnt(s, vm=None, lg=None):
        parts = []
        if vm is not None:
            vm = min(vm, 63)
            parts.append('vmcnt(%d)' % vm); s.vm_retired = max(s.vm_retired, s.vm_issued - vm)
        if lg is not None:
            lg = min(lg, 15)
            parts.append('lgkmcnt(%d)' % lg); s.lg_retired = max(s.lg_retired, s.lg_issued - lg)
        if parts:
            s._emit('s_waitcnt ' + ' '.join(parts))
    def need(s, items):
        vm = None; lg = None
        for c, idx in items:
            if c == 'vm' and idx >= s.vm_retired:
                n = s.vm_issued - 1 - idx
                vm = n if vm is None else min(vm, n)
            if c == 'lg' and idx >= s.lg_retired:
                n = s.lg_issued - 1 - idx
                lg = n if lg is None else min(lg, n)
        if vm is not None or lg is not None:
            s.waitcnt(vm, lg)
    def wait_tag(s, *tags):
        s.need([s.tags[t] for t in tags if t in s.tags])
    def tag_retired(s, tag):
        c, idx = s.tags[tag]
        return idx < (s.vm_retired if c == 'vm' else s.lg_retired)
    def emit(s, op):
        if isinstance(op, str):
            s.raw(op); return
        items = []
        for r in list(op.rd) + list(op.wr):
            if r in s.pend:
                items.append(s.pend[r])
        s.need(items)
        for r in list(op.rd) + list(op.wr):
            if r in s.pend:
                del s.pend[r]
        req = 0
        def gap(p, n):
            nonlocal req
            have = s.pos - p - 1
            if n - have > req:
                req = n - have
        k = op.kind
        isvalu = k in ('valu', 'trans', 'perm', 'readlane', 'dpp')
        ismem = k in ('ds_read', 'ds_write', 'dma', 'vm_load', 'vm_store')
        for r in op.rd:
            if k == 'mfma' and r in s.w_valu: gap(s.w_valu[r], 2)
            if r in s.w_mfma:
                p, passes, dfirst, dn = s.w_mfma[r]
                n = 12 if passes == 8 else 8
                if k == 'mfma':
                    if r in op.cread and op.wr and op.wr[0] == dfirst and len(op.wr) == dn and set(op.cread) == set(op.wr) and op.passes == passes and r not in (set(op.rd) - set(op.cread)):
                        pass
                    elif r in op.cread and r not in [x for x in op.rd if x not in op.cread]:
                        gap(p, 10 if passes == 8 else 6)
                    else:
                        gap(p, n)
                elif isvalu or ismem:
                    gap(p, n)
            if isvalu and k != 'trans' and r in s.w_trans: gap(s.w_trans[r], 1)
            if isvalu and r in s.w_vsgpr and k != 'readlane': gap(s.w_vsgpr[r], 2)
            if k == 'readlane' and r in s.w_vsgpr: gap(s.w_vsgpr[r], 4)
            if ismem and r in s.w_vsgpr: gap(s.w_vsgpr[r], 5)
            if k == 'salu' and r in s.w_vsgpr: gap(s.w_vsgpr[r], 2)
            if k == 'readlane' and r in s.w_valu: gap(s.w_valu[r], 1)
            if k in ('perm', 'dpp') and r in s.w_valu: gap(s.w_valu[r], 2)
            if k == 'dma' and r == 'm0': gap(s.w_m0, 1)
        for r in op.wr:
            if r in s.w_mfma and (isvalu or k in ('ds_read', 'vm_load')):
                p, passes, _, _ = s.w_mfma[r]
                gap(p, 12 if passes == 8 else 8)
            if r in s.w_mfma and k == 'mfma':
                p, passes, dfirst, dn = s.w_mfma[r]
                if not (set(op.cread) == set(op.wr) and op.wr[0] == dfirst and len(op.wr) == dn):
                    gap(p, 10 if passes == 8 else 6)
            if isvalu and r in s.r_mfmac:
                p, passes = s.r_mfmac[r]
                gap(p, 7 if passes == 8 else 3)
            if r in s.st_data:
                gap(s.st_data[r], 2 if isvalu else 1)
        if req > 0:
            s.nop(req)
        p = s.pos
        s._emit(op.text)
        for r in op.wr:
            s.w_valu.pop(r, None); s.w_trans.pop(r, None); s.w_mfma.pop(r, None); s.w_vsgpr.pop(r, None)
        if isvalu:
            for r in op.wr:
                if r.startswith('v') and r != 'vcc':
                    s.w_valu[r] = p
                    if k == 'trans': s.w_trans[r] = p
                else:
                    s.w_vsgpr[r] = p
        if k == 'mfma':
            for r in op.wr:
                s.w_mfma[r] = (p, op.passes, op.wr[0], len(op.wr))
            for r in op.cread:
                s.r_mfmac[r] = (p, op.passes)
        if k == 'salu' and 'm0' in op.wr:
            s.w_m0 = p
        if k in ('ds_read', 'ds_write'):
            idx = s.lg_issued; s.lg_issued += 1
            for r in op.wr: s.pend[r] = ('lg', idx)
            if op.tag is not None: s.tags[op.tag] = ('lg', idx)
        if k in ('dma', 'vm_load', 'vm_store'):
            idx = s.vm_issued; s.vm_issued += 1
            for r in op.wr: s.pend[r] = ('vm', idx)
            if op.tag is not None: s.tags[op.tag] = ('vm', idx)
        if k == 'vm_store' or k == 'ds_write':
            if 'x4' in op.text or 'x3' in op.text or 'b128' in op.text:
                for r in op.rd:
                    if r.startswith('v'): s.st_data[r] = p
        if k == 'smem':
            raise ValueError('emit smem via raw() with explicit waits')
    def __call__(s, mn, *ops, mods='', tag=None):
        s.emit(mkop(mn, *ops, mods=mods, tag=tag))
    def barrier(s):
        s._emit('s_barrier')
    def fork(s):
        import copy
        n = Asm()
        for k, v in s.__dict__.items():
            if k == 'out': continue
            setattr(n, k, copy.deepcopy(v))
        n.out = []
        return n
    def text(s):
        return '\n'.join(s.out) + '\n'
```

```python
from asmfw import *
import struct

def f2u(x):
    return struct.unpack('<I', struct.pack('<f', x))[0]
def lit(x):
    return '0x%08x' % f2u(x)

LOG2E = 1.4426950408889634
K0 = -2.0 * 0.7978845608028654 * LOG2E
K1C = K0 * 0.044715

SLOT = 16384
H_BYTES = 64 * 144 * 1024
ACC_OFF = H_BYTES
KVL = 9 * SLOT
D = 9
OOB = 0x7ffffff0

S_X, S_Q, S_G, S_U, S_H, S_Z, S_A, S_DBG = 24, 28, 32, 36, 40, 44, 68, 72
S_WD, S_WO = 84, 88
sW, sM, sC, sI, sP = 48, 49, 50, 51, 52
sXoff = 53; sM0 = 54; sM0b = 55; sFo = 56; sFo2 = 57; sQo = 58; sHb = 59
sT0, sT1, sT2, sT3 = 60, 61, 62, 63
sMask = 64
sHq = 66; sHq2 = 67
sHo = 76; sSlot = 77; sB = 78; sTyp = 79
sPC = 80
sSpin = 82; sDone = 83
sZoff = 92; sC12 = 93; sT4 = 94

vLane = 1; vL16 = 2; vK1 = 3; vRS = 4; vC0 = 5; vOnes = 6
vLq = 7
vLp = 10
vKa, vKb = 10, 11
vDa, vDb, vDc, vDd = 13, 14, 15, 16
vFlag = 17
vT = 18
vSig = 46; vKvl = 47
vW = 48; vAcc = 64; vX = 128

def acc(setn, unit): return vAcc + setn * 32 + unit * 16
def wfr(buf, unit): return vW + buf * 8 + unit * 4
def xfr(kk): return vX + kk * 4

FILL = dict(default=5)

def x_dma(a, idx):
    base = (idx % D) * SLOT
    for e in range(2):
        a('s_add_u32', 'm0', sr(sM0b), str(base + e * 1024))
        a('s_add_u32', sr(sT0), sr(sXoff), str(idx * 128))
        a('buffer_load_dwordx4', vr(vT + e), sr(S_X, 4), sr(sT0), mods='offen lds', tag=('dma', idx) if e == 1 else None)

def k1_prologue(a, code_bytes):
    a.raw('  s_cmp_ge_u32 s2, 256')
    a.raw('  s_cbranch_scc1 L_k1_exit')
    a.raw('  s_load_dwordx16 s[4:19], s[0:1], 0')
    a.raw('  s_load_dwordx4 s[20:23], s[0:1], 64')
    a('v_and_b32', vr(vLane), '63', 'v0')
    a('v_lshrrev_b32', vr(vT), '6', 'v0')
    a('v_lshlrev_b32', vr(vL16), '4', vr(vLane))
    a('v_readfirstlane_b32', sr(sW), vr(vT))
    a('s_and_b32', sr(sT0), 's2', '7')
    a('s_lshr_b32', sr(sSlot), 's2', '3')
    a('s_lshr_b32', sr(sT1), sr(sT0), '1')
    a('s_and_b32', sr(sB), sr(sT0), '1')
    a('s_lshl_b32', sr(sI), sr(sT1), '2')
    a('s_and_b32', sr(sT2), sr(sSlot), '3')
    a('s_add_u32', sr(sI), sr(sI), sr(sT2))
    a('s_lshr_b32', sr(sT2), sr(sSlot), '2')
    a('s_lshl_b32', sr(sT3), sr(sB), '3')
    a('s_add_u32', sr(sT2), sr(sT2), sr(sT3))
    a('s_lshr_b32', sr(sP), sr(sT2), '1')
    a('s_and_b32', sr(sTyp), sr(sT2), '1')
    a('s_and_b32', sr(sM), sr(sW), '3')
    a('s_lshr_b32', sr(sC), sr(sW), '2')
    a('s_lshl_b32', sr(sXoff), sr(sI), '17')
    a('s_lshl_b32', sr(sM0), sr(sW), '10')
    a('s_lshl_b32', sr(sM0b), sr(sW), '11')
    a('s_lshl_b32', sr(sQo), sr(sP), '7')
    t = vT + 8
    a('v_lshrrev_b32', vr(t), '3', vr(vLane))
    a('s_lshl_b32', sr(sT0), sr(sW), '4')
    a('v_add_u32', vr(t), sr(sT0), vr(t))
    a('v_lshlrev_b32', vr(t), '10', vr(t))
    a('v_and_b32', vr(t + 1), '7', vr(vLane))
    a('v_lshrrev_b32', vr(t + 2), '4', vr(vLane))
    a('v_xor_b32', vr(t + 1), vr(t + 1), vr(t + 2))
    a('v_lshl_add_u32', vr(vT), vr(t + 1), '4', vr(t))
    a('v_xor_b32', vr(vT + 1), '64', vr(vT))
    a('v_add_u32', vr(vT + 1), '0x2000', vr(vT + 1))
    a.raw('  s_getpc_b64 s[%d:%d]' % (sPC, sPC + 1))
    a.label('L_k1_pc')
    a.raw('  s_waitcnt lgkmcnt(0)')
    a.pos += 2
    def srd(d, lo, size):
        a('s_mov_b32', sr(d), sr(lo)); a('s_mov_b32', sr(d + 1), sr(lo + 1))
        a('s_mov_b32', sr(d + 2), hex(size)); a('s_mov_b32', sr(d + 3), '0x20000')
    srd(S_X, 4, 2048 * 1024)
    for idx in range(8):
        x_dma(a, idx)
    a('s_cmp_eq_u32', sr(sTyp), '0')
    a.raw('  s_mov_b32 s%d, L_k1_E-L_k1_pc' % sT1); a.pos += 1
    a.raw('  s_mov_b32 s%d, L_k1_O-L_k1_pc' % sT2); a.pos += 1
    a('s_cselect_b32', sr(sT0), sr(sT1), sr(sT2))
    a('s_add_u32', sr(sPC), sr(sPC), sr(sT0))
    a('s_addc_u32', sr(sPC + 1), sr(sPC + 1), '0')
    a('v_lshlrev_b32', vr(t), '4', 'v0')
    n = (code_bytes + 8191) // 8192
    for i in range(n):
        a('global_load_dwordx4', vr(acc(1, 0) + 4 * i, 4), vr(t), sr(sPC, 2))
        if i + 1 < n:
            a('v_add_u32', vr(t), '0x2000', vr(t))
    srd(S_Q, 6, 512 * 3072)
    srd(S_G, 12, 512 * 3584)
    srd(S_U, 14, 512 * 3584)
    srd(S_DBG, 20, 256)
    a('s_mov_b32', sr(S_H), 's22'); a('s_mov_b32', sr(S_H + 1), 's23')
    a('s_mov_b32', sr(S_H + 2), hex(H_BYTES)); a('s_mov_b32', sr(S_H + 3), '0x20000')
    a('s_lshl_b32', sr(sT0), sr(sP), '13')
    a('s_add_u32', sr(sT0), sr(sT0), hex(ACC_OFF))
    a('s_add_u32', sr(S_A), 's22', sr(sT0))
    a('s_addc_u32', sr(S_A + 1), 's23', '0')
    a('s_mov_b32', sr(S_A + 2), '8192'); a('s_mov_b32', sr(S_A + 3), '0x20000')
    a('s_lshl_b32', sr(sT0), sr(sI), '2')
    a('s_add_u32', sr(sT0), sr(sT0), sr(sM))
    a('s_mul_i32', sr(sHb), sr(sT0), str(144 * 1024))
    a('s_mov_b32', sr(sMask), '0xffff'); a('s_mov_b32', sr(sMask + 1), '0xffff')
    a('s_and_b32', sr(sT0), sr(sP), '1')
    a('s_lshl_b32', sr(sT0), sr(sT0), '6')
    a('s_lshr_b32', sr(sT1), sr(sP), '1')
    a('s_lshl_b32', sr(sT1), sr(sT1), '2')
    a('s_add_u32', sr(sT0), sr(sT0), sr(sT1))
    a('s_add_u32', sr(sDone), sr(sT0), '128')
    a('s_lshl_b32', sr(sZoff), sr(sP), '2')
    a('s_lshl_b32', sr(sC12), sr(sC), '12')
    a('s_cmp_eq_u32', sr(sTyp), '0')
    a.raw('  s_cbranch_scc0 L_k1_O'); a.pos += 1

class K1:
    def __init__(s, typ, a):
        s.a = a; s.typ = typ
        s.fq = []
        s.freed = 0
        s.issued = 8
        s.stage_reads = {}
        s.stage_done = set()
        s.prebar = []; s.postbar = []
        s.rounds = ['GU0', 'QP', 'GU1'] if typ == 'E' else ['KV', 'GU0', 'P2']
        s.stages = [('X', c) for c in range(8)]
        s.round_stage0 = []
        for rn in s.rounds:
            s.round_stage0.append(len(s.stages))
            n = 4 if rn in ('QP', 'P2') else 8
            s.stages += [(rn, t) for t in range(n)]

    def dma(s, idx):
        a = s.a
        kind, t = s.stages[idx]
        base = (idx % D) * SLOT
        tag = ('dma', idx)
        def one(m0reg, m0imm, voff, srd, soff_reg, soff_imm, tg=None):
            a('s_add_u32', 'm0', sr(m0reg), str(base + m0imm))
            a('s_add_u32', sr(sT0), sr(soff_reg), str(soff_imm))
            a('buffer_load_dwordx4', vr(voff), sr(srd, 4), sr(sT0), mods='offen lds', tag=tg)
        if kind in ('GU0', 'GU1'):
            fo = sFo if kind == 'GU0' else sFo2
            one(sM0, 0, vDa, S_G, fo, t * 64 * 3584)
            one(sM0, 8192, vDa, S_U, fo, t * 64 * 3584, tag)
        elif kind == 'KV':
            one(sM0, 0, vDb, S_Q, sQo, t * 64 * 3072 + 1024)
            one(sM0, 8192, vDb, S_Q, sQo, t * 64 * 3072 + 2048, tag)
        elif kind == 'QP':
            one(sM0b, 0, vDb, S_Q, sQo, t * 128 * 3072)
            one(sM0b, 1024, vDb, S_Q, sQo, t * 128 * 3072 + 8 * 3072, tag)
        elif kind == 'P2':
            one(sM0, 0, vDc, S_G, sFo2, t * 128 * 3584)
            one(sM0, 8192, vDd, S_U, sFo2, t * 128 * 3584, tag)
        else:
            raise ValueError

    def bar(s, idx):
        a = s.a
        a.wait_tag(('dma', idx))
        pb, s.prebar = s.prebar, []
        for f in pb: f()
        nfree = s.freed
        while nfree < len(s.stages) and nfree in s.stage_done and all(i < a.lg_retired for (_, i) in s.stage_reads.get(nfree, [])):
            nfree += 1
        a.barrier()
        s.freed = nfree
        while s.issued < len(s.stages) and s.issued - D < s.freed:
            s.dma(s.issued); s.issued += 1
        pb, s.postbar = s.postbar, []
        for f in pb: f()

    def fill(s, n):
        k = 0
        while k < n and s.fq:
            op = s.fq.pop(0)
            if callable(op): op()
            elif op is None: k += 1
            else:
                s.a.emit(op); k += 1
    def flush(s):
        while s.fq: s.fill(1)

    def ep_geglu(s, g, u, nval, hreg, imms):
        ops = []
        o = lambda mn, *x, **k: ops.append(mkop(mn, *x, **k))
        T = vT + 16
        for fr in range(nval // 8):
            P = vT + 20 + 4 * fr
            for b in range(2):
                idx = [fr * 8 + b * 4 + i for i in range(4)]
                for i, r in enumerate(idx): o('v_mul_f32', vr(T + i), vr(g + r), vr(g + r))
                for i, r in enumerate(idx): o('v_fmaak_f32', vr(T + i), vr(T + i), vr(vK1), lit(K0))
                for i, r in enumerate(idx): o('v_mul_f32', vr(T + i), vr(g + r), vr(T + i))
                for i, r in enumerate(idx): o('v_exp_f32', vr(T + i), vr(T + i))
                for i, r in enumerate(idx): o('v_mul_f32', vr(u + r), vr(g + r), vr(u + r))
                for i, r in enumerate(idx): o('v_add_f32', vr(T + i), '1.0', vr(T + i))
                for i, r in enumerate(idx): o('v_rcp_f32', vr(T + i), vr(T + i))
                if True:
                    i = 0
                for i, r in enumerate(idx): o('v_mul_f32', vr(u + r), vr(u + r), vr(T + i))
                o('v_cvt_pk_bf16_f32', vr(P + 2 * b), vr(u + idx[0]), vr(u + idx[1]))
                o('v_cvt_pk_bf16_f32', vr(P + 2 * b + 1), vr(u + idx[2]), vr(u + idx[3]))
            o('s_add_u32', sr(sT1), sr(hreg), str(imms[fr]))
            o('buffer_store_dwordx4', vr(P, 4), vr(vL16), sr(S_H, 4), sr(sT1), mods='offen sc1')
        return ops

    def phi_ops(s, a0, n, P):
        ops = []
        o = lambda mn, *x, **k: ops.append(mkop(mn, *x, **k))
        T = vT + 16
        for b in range(n // 4):
            r = [a0 + 4 * b + i for i in range(4)]
            o('v_cvt_pk_bf16_f32', vr(T + 0), vr(r[0]), vr(r[1]))
            o('v_cvt_pk_bf16_f32', vr(T + 1), vr(r[2]), vr(r[3]))
            o('v_lshlrev_b32', vr(r[0]), '16', vr(T + 0))
            o('v_and_b32', vr(r[1]), '0xffff0000', vr(T + 0))
            o('v_lshlrev_b32', vr(r[2]), '16', vr(T + 1))
            o('v_and_b32', vr(r[3]), '0xffff0000', vr(T + 1))
            for i in range(4): o('v_min_f32', vr(T + i), '0', vr(r[i]))
            for i in range(4): o('v_mul_f32', vr(T + i), lit(LOG2E), vr(T + i))
            for i in range(4): o('v_exp_f32', vr(T + i), vr(T + i))
            for i in range(4): o('v_max_f32', vr(r[i]), '0', vr(r[i]))
            for i in range(4): o('v_add_f32', vr(T + i), lit(1e-6), vr(T + i))
            for i in range(4): o('v_add_f32', vr(r[i]), vr(r[i]), vr(T + i))
            o('v_cvt_pk_bf16_f32', vr(P + 2 * b), vr(r[0]), vr(r[1]))
            o('v_cvt_pk_bf16_f32', vr(P + 2 * b + 1), vr(r[2]), vr(r[3]))
        return ops

    def ep_kv(s, setn):
        ops = []
        o = lambda mn, *x, **k: ops.append(mkop(mn, *x, **k))
        k = acc(setn, 0); v = acc(setn, 1)
        PK = vT + 20; PV = vT + 0; DB = vT + 0
        for i in range(8): o('v_cvt_pk_bf16_f32', vr(PV + i), vr(v + 2 * i), vr(v + 2 * i + 1))
        for i in range(8): o('v_cndmask_b32', vr(v + i), vr(vOnes), vr(PV + i), sr(sMask, 2))
        for i in range(8): o('v_cndmask_b32', vr(v + 8 + i), vr(PV + i), vr(vOnes), sr(sMask, 2))
        ops += s.phi_ops(k, 16, PK)
        ops += [None, None]
        o('v_mfma_f32_32x32x16_bf16', vr(k, 16), vr(PK, 4), vr(v, 4), '0')
        o('v_mfma_f32_32x32x16_bf16', vr(DB, 16), vr(PK, 4), vr(v + 8, 4), '0')
        o('v_mfma_f32_32x32x16_bf16', vr(k, 16), vr(PK + 4, 4), vr(v + 4, 4), vr(k, 16))
        o('v_mfma_f32_32x32x16_bf16', vr(DB, 16), vr(PK + 4, 4), vr(v + 12, 4), vr(DB, 16))
        ops += [None] * 12
        for r in range(8): o('ds_add_f32', vr(vKvl), vr(k + r), mods='offset:%d' % (r * 256))
        for r in range(8): o('ds_add_f32', vr(vKvl), vr(DB + 8 + r), mods='offset:%d' % ((8 + r) * 256), tag='kvadd' if r == 7 else None)
        return ops

    def spin(s, name, soff, target):
        a = s.a
        a('v_readfirstlane_b32', sr(sT2), vr(vFlag))
        a('s_cmp_ge_u32', sr(sT2), str(target))
        a.raw('  s_cbranch_scc1 L_%s_ok' % name)
        a.raw('  s_mov_b32 %s, 0' % sr(sSpin))
        a.label('L_%s_spin' % name)
        a.raw('  s_sleep 2')
        a.raw('  buffer_load_dword %s, off, %s, %s sc1' % (vr(vFlag), sr(S_DBG, 4), sr(soff)))
        a.raw('  s_waitcnt vmcnt(0)')
        a.raw('  v_readfirstlane_b32 %s, %s' % (sr(sT2), vr(vFlag)))
        a.raw('  s_add_u32 %s, %s, 1' % (sr(sSpin), sr(sSpin)))
        a.raw('  s_cmp_ge_u32 %s, 0x200000' % sr(sSpin))
        a.raw('  s_cbranch_scc1 L_%s_ok' % name)
        a.raw('  s_cmp_ge_u32 %s, %d' % (sr(sT2), target))
        a.raw('  s_cbranch_scc0 L_%s_spin' % name)
        a.label('L_%s_ok' % name)
        a.pos += 2
        a.nop(2)

    def poll(s, soff):
        a = s.a
        op = Op('buffer_load_dword %s, off, %s, %s sc1' % (vr(vFlag), sr(S_DBG, 4), sr(soff)), 'vm_load',
                regs_of(sr(S_DBG, 4)) + [sr(soff)], [vr(vFlag)])
        a.emit(op)

    def signal(s, soff):
        a = s.a
        a('v_mov_b32', vr(vT + 15), '1')
        a('buffer_atomic_add', vr(vT + 15), vr(vSig), sr(S_DBG, 4), sr(soff), mods='offen')

    def ln_ops(s, kk):
        ops = []
        o = lambda mn, *x, **k: ops.append(mkop(mn, *x, **k))
        T = vT + 0
        x = xfr(kk)
        for i in range(4): o('v_lshlrev_b32', vr(T + 2 * i), '16', vr(x + i))
        for i in range(4): o('v_and_b32', vr(T + 2 * i + 1), '0xffff0000', vr(x + i))
        for i in range(8): o('v_fma_f32', vr(T + i), vr(T + i), vr(vRS), vr(vC0))
        for i in range(4): o('v_cvt_pk_bf16_f32', vr(x + i), vr(T + 2 * i), vr(T + 2 * i + 1))
        return ops

    def rbf(s, r):
        a = s.a
        a('v_cvt_pk_bf16_f32', vr(r), vr(r), vr(r))
        a('v_lshlrev_b32', vr(r), '16', vr(r))

    def wread(s, rnd, kk):
        a = s.a
        rn = s.rounds[rnd]
        per = 8 if rn in ('QP', 'P2') else 4
        st = s.round_stage0[rnd] + kk // per
        so = (st % D) * SLOT
        win, so = so >> 16, so & 0xffff
        kq = kk % per
        units = 1 if rn in ('QP', 'P2') else 2
        for u in range(units):
            for q in range(2):
                if rn == 'P2':
                    base = vLp + win; off = so + kq * 1024 + q * 256
                else:
                    base = vLq + win; off = so + u * 8192 + kq * 2048 + q * 512
                a('ds_read_b64_tr_b16', vr(s.wbuf(rnd, kk, u) + 2 * q, 2), vr(base), mods='offset:%d' % off)
                s.stage_reads.setdefault(st, []).append(('lg', a.lg_issued - 1))
        if kq == per - 1:
            s.stage_done.add(st)

    def setup(s):
        a = s.a; typ = s.typ
        if typ == 'E':
            a('s_mul_i32', sr(sT0), sr(sP), '224')
            a('s_and_b32', sr(sT1), sr(sP), '1')
            a('s_mul_i32', sr(sT1), sr(sT1), '96')
            a('s_add_u32', sr(sT0), sr(sT0), sr(sT1))
            a('s_lshl_b32', sr(sFo), sr(sT0), '1')
            a('s_add_u32', sr(sFo2), sr(sFo), '128')
            a('s_lshl_b32', sr(sT0), sr(sT0), '6')
            a('s_add_u32', sr(sHq), sr(sHb), sr(sT0))
            a('s_lshl_b32', sr(sT1), sr(sC), '11')
            a('s_add_u32', sr(sHq), sr(sHq), sr(sT1))
            a('s_add_u32', sr(sHq2), sr(sHq), '4096')
            a('s_lshl_b32', sr(sT0), sr(sP), '12')
            a('s_add_u32', sr(sHo), sr(sHb), sr(sT0))
            a('s_add_u32', sr(sHo), sr(sHo), sr(sT1))
            a('s_add_u32', sr(sHo), sr(sHo), str(112 * 1024))
        else:
            a('s_mul_i32', sr(sT0), sr(sP), '224')
            a('s_and_b32', sr(sT1), sr(sP), '1')
            a('s_cmp_eq_u32', sr(sT1), '0')
            a('s_cselect_b32', sr(sT2), '128', '32')
            a('s_cselect_b32', sr(sT3), '192', '0')
            a('s_add_u32', sr(sT2), sr(sT2), sr(sT0))
            a('s_add_u32', sr(sT3), sr(sT3), sr(sT0))
            a('s_lshl_b32', sr(sFo), sr(sT2), '1')
            a('s_lshl_b32', sr(sFo2), sr(sT3), '1')
            a('s_lshl_b32', sr(sT2), sr(sT2), '6')
            a('s_lshl_b32', sr(sT3), sr(sT3), '6')
            a('s_lshl_b32', sr(sT1), sr(sC), '11')
            a('s_add_u32', sr(sHq), sr(sHb), sr(sT2))
            a('s_add_u32', sr(sHq), sr(sHq), sr(sT1))
            a('s_lshl_b32', sr(sT1), sr(sC), '10')
            a('s_add_u32', sr(sHq2), sr(sHb), sr(sT3))
            a('s_add_u32', sr(sHq2), sr(sHq2), sr(sT1))
        t = vT + 8
        a('v_lshrrev_b32', vr(t), '3', vr(vLane))
        a('v_and_b32', vr(t + 1), '7', vr(vLane))
        a('v_lshrrev_b32', vr(t + 2), '2', vr(vLane))
        a('v_and_b32', vr(t + 2), '4', vr(t + 2))
        a('v_xor_b32', vr(t + 1), vr(t + 1), vr(t + 2))
        a('v_lshlrev_b32', vr(t + 1), '4', vr(t + 1))
        a('s_lshl_b32', sr(sT0), sr(sW), '3')
        a('v_add_u32', vr(t + 3), sr(sT0), vr(t))
        a('v_mul_u32_u24', vr(vDa), '3584', vr(t + 3))
        a('v_add_u32', vr(vDa), vr(vDa), vr(t + 1))
        if typ == 'E':
            a('s_lshl_b32', sr(sT0), sr(sW), '4')
            a('v_add_u32', vr(t + 3), sr(sT0), vr(t))
            a('v_mul_u32_u24', vr(vDb), '3072', vr(t + 3))
            a('v_add_u32', vr(vDb), vr(vDb), vr(t + 1))
        else:
            a('v_mul_u32_u24', vr(vDb), '3072', vr(t + 3))
            a('v_add_u32', vr(vDb), vr(vDb), vr(t + 1))
        while s.issued < D:
            s.dma(s.issued); s.issued += 1
        if typ == 'O':
            a('s_lshl_b32', sr(sT0), sr(sW), '4')
            a('v_lshrrev_b32', vr(t + 3), '2', vr(vLane))
            a('v_add_u32', vr(t + 3), sr(sT0), vr(t + 3))
            a('v_mul_u32_u24', vr(vDc), '3584', vr(t + 3))
            a('v_and_b32', vr(t + 3), '3', vr(vLane))
            a('v_lshlrev_b32', vr(t + 3), '4', vr(t + 3))
            a('v_add_u32', vr(vDc), vr(vDc), vr(t + 3))
            a('v_xor_b32', vr(vDd), '32', vr(vDc))
            Z = vT + 4
            for i in range(4): a('v_mov_b32', vr(Z + i), '0')
            a('s_mov_b32', sr(S_Z), sr(S_A)); a('s_mov_b32', sr(S_Z + 1), sr(S_A + 1))
            a('s_cmp_eq_u32', sr(sI), '0')
            a('s_cselect_b32', sr(S_Z + 2), '8192', '0')
            a('s_mov_b32', sr(S_Z + 3), '0x20000')
            a('s_cselect_b32', sr(sT4), sr(sZoff), hex(OOB))
            a('buffer_store_dwordx4', vr(Z, 4), vr(vL16), sr(S_Z, 4), sr(sM0), mods='offen sc1', tag='zst')
            a('v_add_u32', vr(t + 3), sr(sM0), vr(vL16))
            a('v_add_u32', vr(t + 3), hex(KVL), vr(t + 3))
            a('ds_write_b128', vr(t + 3), vr(Z, 4), tag='zlds')
            a('v_lshlrev_b32', vr(vKvl), '2', vr(vLane))
            a('v_add_u32', vr(vKvl), sr(sC12), vr(vKvl))
            a('v_add_u32', vr(vKvl), hex(KVL), vr(vKvl))
        else:
            a('v_lshlrev_b32', vr(vKa), '2', vr(vLane))
            a('v_xor_b32', vr(vKb), '64', vr(vKa))
        a('v_mov_b32', vr(t + 4), hex(OOB))
        a('v_cmp_eq_u32', 'vcc', '0', 'v0')
        a('v_mov_b32', vr(t + 5), '0')
        a('v_cndmask_b32', vr(vSig), vr(t + 4), vr(t + 5))
        a('v_lshrrev_b32', vr(t), '5', vr(vLane))
        a('v_lshlrev_b32', vr(t), '3', vr(t))
        a('v_bfe_u32', vr(t + 1), vr(vLane), '2', '2')
        a('v_add_u32', vr(t), vr(t), vr(t + 1))
        a('v_bfe_u32', vr(t + 2), vr(vLane), '4', '1')
        a('v_bfe_u32', vr(t + 3), vr(vLane), '1', '1')
        a('v_and_b32', vr(t + 4), '1', vr(vLane))
        a('v_lshlrev_b32', vr(t + 4), '3', vr(t + 4))
        a('v_lshl_add_u32', vr(t + 5), vr(t + 2), '1', vr(t + 3))
        a('s_lshl_b32', sr(sT0), sr(sC), '2')
        a('v_add_u32', vr(t + 5), sr(sT0), vr(t + 5))
        a('v_bfe_u32', vr(t + 6), vr(vLane), '3', '1')
        a('v_lshlrev_b32', vr(t + 6), '2', vr(t + 6))
        a('v_xor_b32', vr(t + 5), vr(t + 5), vr(t + 6))
        a('v_lshlrev_b32', vr(t + 5), '4', vr(t + 5))
        a('v_lshl_add_u32', vr(vLq), vr(t), '7', vr(t + 5))
        a('v_add_u32', vr(vLq), vr(vLq), vr(t + 4))
        a('v_add_u32', vr(vLq + 1), '0x10000', vr(vLq))
        a('v_add_u32', vr(vLq + 2), '0x20000', vr(vLq))
        if typ == 'O':
            a('s_lshl_b32', sr(sT0), sr(sC), '1')
            a('v_add_u32', vr(t + 5), sr(sT0), vr(t + 3))
            a('v_lshlrev_b32', vr(t + 6), '1', vr(t + 2))
            a('v_xor_b32', vr(t + 5), vr(t + 5), vr(t + 6))
            a('v_lshlrev_b32', vr(t + 5), '4', vr(t + 5))
            a('v_lshl_add_u32', vr(vLp), vr(t), '6', vr(t + 5))
            a('v_add_u32', vr(vLp), vr(vLp), vr(t + 4))
            a('v_lshlrev_b32', vr(t + 6), '13', vr(t + 2))
            a('v_add_u32', vr(vLp), vr(vLp), vr(t + 6))
            a('v_add_u32', vr(vLp + 1), '0x10000', vr(vLp))
            a('v_add_u32', vr(vLp + 2), '0x20000', vr(vLp))
        XA = vAcc
        a('v_and_b32', vr(t), '31', vr(vLane))
        a('s_lshl_b32', sr(sT0), sr(sM), '5')
        a('v_add_u32', vr(t + 1), sr(sT0), vr(t))
        a('v_lshlrev_b32', vr(t + 1), '7', vr(t + 1))
        a('v_bfe_u32', vr(t + 2), vr(vLane), '1', '3')
        a('v_lshrrev_b32', vr(t + 3), '5', vr(vLane))
        a('v_xor_b32', vr(t + 2), vr(t + 2), vr(t + 3))
        for kq in range(4):
            a('v_xor_b32', vr(t + 4), str(2 * kq), vr(t + 2))
            a('v_lshl_add_u32', vr(XA + kq), vr(t + 4), '4', vr(t + 1))
        a('v_mov_b32', vr(vK1), lit(K1C))
        a('v_mov_b32', vr(vOnes), '0x3f803f80')
        for i in range(8): a('v_mov_b32', vr(vAcc + 4 + i), '0')

    def stats(s, c):
        a = s.a
        SA = vAcc + 4
        for kq in range(4):
            x = xfr(4 * c + kq)
            for i in range(4):
                a('v_dot2c_f32_bf16', vr(SA + i), vr(x + i), vr(vOnes))
                a('v_dot2c_f32_bf16', vr(SA + 4 + i), vr(x + i), vr(x + i))

    def xphase(s):
        a = s.a
        XA = vAcc
        for c in range(8):
            if c > 0:
                s.prebar.append(lambda: a.waitcnt(lg=0))
            if s.typ == 'O' and c == 3:
                s.prebar.append(lambda: a.wait_tag('zst'))
                s.postbar.append(lambda: s.signal(sT4))
            s.bar(c)
            if c == 4:
                for kq in range(4): a('v_add_u32', vr(XA + kq), '0x10000', vr(XA + kq))
            so = (c * SLOT) & 0xffff
            for kq in range(4):
                a('ds_read_b128', vr(xfr(4 * c + kq), 4), vr(XA + kq), mods='offset:%d' % so)
                s.stage_reads.setdefault(c, []).append(('lg', a.lg_issued - 1))
            s.stage_done.add(c)
            if c > 0: s.stats(c - 1)
        s.stats(7)
        SA = vAcc + 4
        a('v_add_f32', vr(SA), vr(SA), vr(SA + 1)); a('v_add_f32', vr(SA + 2), vr(SA + 2), vr(SA + 3))
        a('v_add_f32', vr(SA + 4), vr(SA + 4), vr(SA + 5)); a('v_add_f32', vr(SA + 6), vr(SA + 6), vr(SA + 7))
        a('v_add_f32', vr(SA), vr(SA), vr(SA + 2)); a('v_add_f32', vr(SA + 4), vr(SA + 4), vr(SA + 6))
        a('v_mov_b32', vr(SA + 1), vr(SA)); a('v_mov_b32', vr(SA + 5), vr(SA + 4))
        a('v_permlane32_swap_b32', vr(SA), vr(SA + 1))
        a('v_permlane32_swap_b32', vr(SA + 4), vr(SA + 5))
        a('v_add_f32', vr(SA), vr(SA), vr(SA + 1))
        a('v_add_f32', vr(SA + 4), vr(SA + 4), vr(SA + 5))
        a('v_mul_f32', vr(SA), lit(1.0 / 512), vr(SA))
        a('v_mul_f32', vr(SA + 4), lit(1.0 / 512), vr(SA + 4))
        a('v_fma_f32', vr(SA + 4), '-' + vr(SA), vr(SA), vr(SA + 4))
        a('v_max_f32', vr(SA + 4), '0', vr(SA + 4))
        s.rbf(SA); s.rbf(SA + 4)
        a('v_add_f32', vr(SA + 4), lit(1e-5), vr(SA + 4))
        s.rbf(SA + 4)
        a('v_sqrt_f32', vr(SA + 4), vr(SA + 4))
        s.rbf(SA + 4)
        a('v_rcp_f32', vr(vRS), vr(SA + 4))
        a('v_mul_f32', vr(vC0), vr(SA), vr(vRS))
        a('v_sub_f32', vr(vC0), '0', vr(vC0))

    def l2_prefetch(s):
        a = s.a
        def srd(d, lo, size):
            a('s_mov_b32', sr(d), sr(lo)); a('s_mov_b32', sr(d + 1), sr(lo + 1))
            a('s_mov_b32', sr(d + 2), hex(size)); a('s_mov_b32', sr(d + 3), '0x20000')
        srd(S_WD, 16, 1792 * 1024); srd(S_WO, 8, 512 * 1024)
        t = vT + 8
        a('s_mul_i32', sr(sT2), sr(sSlot), '72')
        a('s_mul_i32', sr(sT3), sr(sW), '9')
        a('s_add_u32', sr(sT2), sr(sT2), sr(sT3))
        a('v_lshrrev_b32', vr(t), '2', vr(vLane))
        a('v_add_u32', vr(t), sr(sT2), vr(t))
        a('v_lshlrev_b32', vr(t), '10', vr(t))
        a('v_and_b32', vr(t + 1), '3', vr(vLane))
        a('v_lshlrev_b32', vr(t + 1), '7', vr(t + 1))
        a('v_add_u32', vr(t), vr(t), vr(t + 1))
        a('s_lshl_b32', sr(sT2), sr(sB), '9')
        a('v_add_u32', vr(t), sr(sT2), vr(t))
        a('v_mov_b32', vr(t + 1), hex(OOB))
        a('v_cmp_gt_u32', 'vcc', '36', vr(vLane))
        a('v_cndmask_b32', vr(t), vr(t + 1), vr(t))
        a('buffer_load_dword', vr(t + 2), vr(t), sr(S_WD, 4), '0', mods='offen')
        a('v_subrev_u32', vr(t + 1), str(1792 * 1024), vr(t))
        a('buffer_load_dword', vr(t + 3), vr(t + 1), sr(S_WO, 4), '0', mods='offen')
        a.raw('  s_getpc_b64 s[%d:%d]' % (sPC, sPC + 1)); a.pos += 1
        lab = 'L_k1_pc2%s' % s.typ
        a.label(lab)
        a.raw('  s_add_u32 s%d, s%d, k2_kernel-%s' % (sPC, sPC, lab)); a.pos += 1
        a.raw('  s_addc_u32 s%d, s%d, 0' % (sPC + 1, sPC + 1)); a.pos += 1
        a('v_lshlrev_b32', vr(t + 4), '4', 'v0')
        a('global_load_dword', vr(t + 5), vr(t + 4), sr(sPC, 2))
        a('v_add_u32', vr(t + 4), '0x2000', vr(t + 4))
        a('global_load_dword', vr(t + 6), vr(t + 4), sr(sPC, 2))

    def o_loads(s):
        a = s.a
        L = vT + 0
        for j in range(8):
            a('buffer_load_dword', vr(L + j), vr(vKa), sr(S_A, 4), sr(sC12), mods='offen offset:%d sc1' % (j * 256))
        for j in range(8):
            a('buffer_load_dword', vr(L + 8 + j), vr(vKb), sr(S_A, 4), sr(sC12), mods='offen offset:%d sc1' % (2048 + j * 256))

    def o_ops(s):
        ops = []
        o = lambda mn, *x, **k: ops.append(mkop(mn, *x, **k))
        L = vT + 0; PQ = vT + 20
        DA = acc(1, 0); DB = acc(1, 1)
        for i in range(4): o('v_cvt_pk_bf16_f32', vr(L + i), vr(L + 2 * i), vr(L + 2 * i + 1))
        for i in range(4): o('v_cvt_pk_bf16_f32', vr(L + 4 + i), vr(L + 8 + 2 * i), vr(L + 8 + 2 * i + 1))
        ops += [None, None]
        o('v_mfma_f32_32x32x16_bf16', vr(DA, 16), vr(L, 4), vr(PQ, 4), '0')
        o('v_mfma_f32_32x32x16_bf16', vr(DB, 16), vr(L + 4, 4), vr(PQ + 4, 4), '0')
        ops += [None] * 12
        T = vT + 16
        for h, Dr in enumerate((DA, DB)):
            o('v_add_f32', vr(T + h), lit(1e-6), vr(Dr + 8))
        for h, Dr in enumerate((DA, DB)):
            o('v_rcp_f32', vr(T + h), vr(T + h))
        ops += [None]
        for h, Dr in enumerate((DA, DB)):
            for r in range(8): o('v_mul_f32', vr(Dr + r), vr(Dr + r), vr(T + h))
            for i in range(4): o('v_cvt_pk_bf16_f32', vr(L + 8 + 4 * h + i), vr(Dr + 2 * i), vr(Dr + 2 * i + 1))
            o('s_add_u32', sr(sT1), sr(sHo), str(h * 1024))
            o('buffer_store_dwordx4', vr(L + 8 + 4 * h, 4), vr(vL16), sr(S_H, 4), sr(sT1), mods='offen sc1')
        return ops

    def kv_atomics(s):
        a = s.a
        s.spin('z', sZoff, 1)
        t = vT + 0
        a('v_lshlrev_b32', vr(t + 4), '2', vr(vLane))
        a('v_add_u32', vr(t + 4), sr(sM0), vr(t + 4))
        a('v_add_u32', vr(t + 5), hex(KVL), vr(t + 4))
        for r in range(4):
            a('ds_read_b32', vr(t + r), vr(t + 5), mods='offset:%d' % (r * 256))
        for r in range(4):
            a('buffer_atomic_add_f32', vr(t + r), vr(t + 4), sr(S_A, 4), '0', mods='offen offset:%d' % (r * 256), tag='kvat' if r == 3 else None)

    def wbuf(s, r, kk, u):
        if s.rounds[r] in ('QP', 'P2'):
            return vW + (kk % 4) * 4
        return vW + (kk % 2) * 8 + u * 4

    def main(s):
        a = s.a; typ = s.typ
        s.setup()
        s.xphase()
        steps = [(r, kk) for r in range(3) for kk in range(32)]
        pair = lambda r: s.rounds[r] in ('QP', 'P2')
        issue_at = {}
        for n, (r, kk) in enumerate(steps):
            t = n - 2 if (pair(r) and kk >= 1) else n - 1
            issue_at.setdefault(t, []).append(n)
        def do_reads(t):
            for n in issue_at.get(t, []):
                r2, kk2 = steps[n]
                per2 = 8 if pair(r2) else 4
                if kk2 % per2 == 0:
                    s.bar(s.round_stage0[r2] + kk2 // per2)
                s.wread(r2, kk2)
        for op in s.ln_ops(0): a.emit(op)
        do_reads(-1)
        events = {}
        if typ == 'E':
            events[(2, 12)] = lambda: s.poll(sDone)
            events[(2, 18)] = lambda: (s.spin('d', sDone, 16), s.o_loads())
            events[(2, 24)] = lambda: s.fq.extend(s.o_ops())
            events[(2, 4)] = s.l2_prefetch
        else:
            events[(0, 20)] = lambda: s.poll(sZoff)
            events[(2, 4)] = s.l2_prefetch
        for n, (r, kk) in enumerate(steps):
            rn = s.rounds[r]
            units = 1 if pair(r) else 2
            if (r, kk) in events: events[(r, kk)]()
            do_reads(n)
            lnq = s.ln_ops(kk + 1) if (r == 0 and kk + 1 < 32) else []
            setn = r % 2
            nf = s.fillrate(r, kk, units)
            for u in range(units):
                Dd = acc(setn, u)
                C = '0' if kk == 0 else vr(Dd, 16)
                wf = vr(s.wbuf(r, kk, u), 4)
                if rn == 'KV':
                    a('v_mfma_f32_32x32x16_bf16', vr(Dd, 16), vr(xfr(kk), 4), wf, C)
                else:
                    a('v_mfma_f32_32x32x16_bf16', vr(Dd, 16), wf, vr(xfr(kk), 4), C)
                if lnq:
                    h = len(lnq) if u == units - 1 else len(lnq) // 2
                    for op in lnq[:h]: a.emit(op)
                    lnq = lnq[h:]
                elif kk >= 1 or r == 0:
                    s.fill(nf)
            if kk == 31:
                s.flush()
                s.push_epilogue(r)
        s.flush()
        a.raw('  s_endpgm')

    def fillrate(s, r, kk, units):
        if s.typ == 'O' and r == 1: return 7
        if units == 1: return 6
        return 4

    def push_epilogue(s, r):
        rn = s.rounds[r]; setn = r % 2
        a = s.a
        if rn in ('GU0', 'GU1'):
            hreg = sHq if rn == 'GU0' else sHq2
            s.fq += s.ep_geglu(acc(setn, 0), acc(setn, 1), 16, hreg, [0, 1024])
        elif rn == 'P2':
            s.fq += s.ep_geglu(acc(setn, 0), acc(setn, 0) + 8, 8, sHq2, [0])
        elif rn == 'QP':
            s.fq += s.phi_ops(acc(setn, 0), 16, vT + 20)
        elif rn == 'KV':
            s.fq += s.ep_kv(setn)
            def after():
                s.prebar.append(lambda: a.wait_tag('kvadd'))
                def post1():
                    s.kv_atomics()
                    def arm():
                        s.prebar.append(lambda: a.wait_tag('kvat'))
                        s.postbar.append(lambda: s.signal(sDone))
                    s.postbar.append(arm)
                s.postbar.append(post1)
            s.fq.append(after)
```

```python
from asmfw import *
from k1 import lit, LOG2E, H_BYTES, SLOT

D2 = 10
NST = 36
S_H, S_WD, S_WO, S_X, S_O = 24, 28, 32, 36, 40
sW, sRB, sCT, sA, sMa, sMb, sBo = 48, 49, 50, 51, 52, 53, 54
sT0, sT1, sT2, sT3 = 60, 61, 62, 63
vLane = 1
vA = 2
vB = 5
vO = 8
vT = 10
vXr = 32
vF = 40
vAcc1 = 72
vAcc2 = 88

def k2_gen():
    a = Asm()
    a.raw('  s_cmp_ge_u32 s2, 256')
    a.raw('  s_cbranch_scc1 L_k2_exit')
    a.raw('  s_load_dwordx16 s[4:19], s[0:1], 0')
    a.raw('  s_load_dwordx4 s[20:23], s[0:1], 64')
    a('v_and_b32', vr(vLane), '63', 'v0')
    a('v_lshrrev_b32', vr(vT), '6', 'v0')
    a('v_readfirstlane_b32', sr(sW), vr(vT))
    a('s_and_b32', sr(sT0), 's2', '7')
    a('s_lshr_b32', sr(sT1), 's2', '3')
    a('s_lshr_b32', sr(sT2), sr(sT0), '1')
    a('s_and_b32', sr(sT3), sr(sT0), '1')
    a('s_lshl_b32', sr(sRB), sr(sT2), '3')
    a('s_and_b32', sr(sT2), sr(sT1), '7')
    a('s_add_u32', sr(sRB), sr(sRB), sr(sT2))
    a('s_lshl_b32', sr(sCT), sr(sT3), '2')
    a('s_lshr_b32', sr(sT1), sr(sT1), '3')
    a('s_add_u32', sr(sCT), sr(sCT), sr(sT1))
    a('s_cmp_ge_u32', sr(sW), '4')
    a.raw('  s_cbranch_scc1 L_k2_loader'); a.pos += 1
    ld = a.fork()

    def srd(x, d, lo, size):
        x('s_mov_b32', sr(d), sr(lo)); x('s_mov_b32', sr(d + 1), sr(lo + 1))
        x('s_mov_b32', sr(d + 2), hex(size)); x('s_mov_b32', sr(d + 3), '0x20000')

    t = vT
    a('s_and_b32', sr(sT0), sr(sW), '1')
    a('s_lshr_b32', sr(sT1), sr(sW), '1')
    a('v_lshlrev_b32', vr(vA), '4', vr(vLane))
    a('s_lshl_b32', sr(sT2), sr(sT0), '12')
    a('v_add_u32', vr(vA), sr(sT2), vr(vA))
    a('v_add_u32', vr(vA + 1), '0x10000', vr(vA))
    a('v_add_u32', vr(vA + 2), '0x20000', vr(vA))
    a('v_lshrrev_b32', vr(t), '5', vr(vLane))
    a('v_lshlrev_b32', vr(t), '2', vr(t))
    a('v_bfe_u32', vr(t + 1), vr(vLane), '2', '2')
    a('v_add_u32', vr(t), vr(t), vr(t + 1))
    a('v_bfe_u32', vr(t + 2), vr(vLane), '4', '1')
    a('v_bfe_u32', vr(t + 3), vr(vLane), '1', '1')
    a('v_and_b32', vr(t + 4), '1', vr(vLane))
    a('v_lshlrev_b32', vr(t + 4), '3', vr(t + 4))
    a('v_lshl_add_u32', vr(t + 5), vr(t + 2), '1', vr(t + 3))
    a('s_lshl_b32', sr(sT2), sr(sT1), '2')
    a('v_add_u32', vr(t + 5), sr(sT2), vr(t + 5))
    a('v_bfe_u32', vr(t + 6), vr(vLane), '3', '1')
    a('v_lshlrev_b32', vr(t + 6), '2', vr(t + 6))
    a('v_xor_b32', vr(t + 5), vr(t + 5), vr(t + 6))
    a('v_lshlrev_b32', vr(t + 5), '4', vr(t + 5))
    a('v_lshl_add_u32', vr(vB), vr(t), '7', vr(t + 5))
    a('v_add_u32', vr(vB), vr(vB), vr(t + 4))
    a('v_add_u32', vr(vB), '0x2000', vr(vB))
    a('v_add_u32', vr(vB + 1), '0x10000', vr(vB))
    a('v_add_u32', vr(vB + 2), '0x20000', vr(vB))
    a('s_lshl_b32', sr(sT2), sr(sRB), '6')
    a('s_lshl_b32', sr(sT3), sr(sT0), '5')
    a('s_add_u32', sr(sT2), sr(sT2), sr(sT3))
    a('v_and_b32', vr(t), '31', vr(vLane))
    a('v_add_u32', vr(t), sr(sT2), vr(t))
    a('v_lshlrev_b32', vr(vO), '10', vr(t))
    a('s_lshl_b32', sr(sT2), sr(sCT), '7')
    a('s_lshl_b32', sr(sT3), sr(sT1), '6')
    a('s_add_u32', sr(sT2), sr(sT2), sr(sT3))
    a('v_lshrrev_b32', vr(t), '5', vr(vLane))
    a('v_lshlrev_b32', vr(t), '3', vr(t))
    a('v_add_u32', vr(t), sr(sT2), vr(t))
    a('v_add_u32', vr(vO), vr(vO), vr(t))
    a.raw('  s_waitcnt lgkmcnt(0)'); a.pos += 1
    srd(a, S_X, 4, 2048 * 1024)
    srd(a, S_O, 18, 2048 * 1024)
    for g in range(4):
        a('buffer_load_dwordx2', vr(vXr + 2 * g, 2), vr(vO), sr(S_X, 4), '0', mods='offen offset:%d' % (g * 16))
    nsteps = NST * 4
    stage_reads = {}
    freed_at = []
    freed = 0
    def reads(n):
        st, q = n // 4, n % 4
        so = (st % D2) * SLOT
        win, so = so >> 16, so & 0xffff
        f = vF + (n % 4) * 8
        a('ds_read_b128', vr(f, 4), vr(vA + win), mods='offset:%d' % (so + q * 1024))
        stage_reads.setdefault(st, []).append(a.lg_issued - 1)
        for qq in range(2):
            a('ds_read_b64_tr_b16', vr(f + 4 + 2 * qq, 2), vr(vB + win), mods='offset:%d' % (so + q * 2048 + qq * 1024))
            stage_reads[st].append(a.lg_issued - 1)
    def bar(st):
        nonlocal freed
        while freed < st and len(stage_reads.get(freed, [])) == 12 and all(i < a.lg_retired for i in stage_reads[freed]):
            freed += 1
        a.barrier()
        freed_at.append(freed)
    DIST = 2
    for n in range(-DIST, nsteps):
        m = n + DIST
        if m < nsteps:
            if m % 4 == 0: bar(m // 4)
            reads(m)
        if n >= 0:
            f = vF + (n % 4) * 8
            Dd = vAcc1 if n < 112 else vAcc2
            C = '0' if n in (0, 112) else vr(Dd, 16)
            a('v_mfma_f32_32x32x16_bf16', vr(Dd, 16), vr(f + 4, 4), vr(f, 4), C)
    T = vT
    for b in range(4):
        r = [4 * b + i for i in range(4)]
        for i in range(4): a('v_mul_f32', vr(T + i), lit(-LOG2E), vr(vAcc1 + r[i]))
        for i in range(4): a('v_exp_f32', vr(T + i), vr(T + i))
        for i in range(4): a('v_mul_f32', vr(vAcc2 + r[i]), vr(vAcc2 + r[i]), vr(vAcc1 + r[i]))
        for i in range(4): a('v_add_f32', vr(T + i), '1.0', vr(T + i))
        for i in range(4): a('v_rcp_f32', vr(T + i), vr(T + i))
        a('v_lshlrev_b32', vr(T + 4), '16', vr(vXr + 2 * b))
        a('v_and_b32', vr(T + 5), '0xffff0000', vr(vXr + 2 * b))
        a('v_lshlrev_b32', vr(T + 6), '16', vr(vXr + 2 * b + 1))
        a('v_and_b32', vr(T + 7), '0xffff0000', vr(vXr + 2 * b + 1))
        for i in range(4): a('v_fma_f32', vr(T + 4 + i), vr(vAcc2 + r[i]), vr(T + i), vr(T + 4 + i))
        a('v_cvt_pk_bf16_f32', vr(T + 8 + 2 * b), vr(T + 4), vr(T + 5))
        a('v_cvt_pk_bf16_f32', vr(T + 9 + 2 * b), vr(T + 6), vr(T + 7))
        a('buffer_store_dwordx2', vr(T + 8 + 2 * b, 2), vr(vO), sr(S_O, 4), '0', mods='offen offset:%d' % (b * 16))
    a.raw('  s_endpgm')

    l = ld
    l.label('L_k2_loader')
    l.nop(2)
    t = vT
    l('s_sub_u32', sr(sW), sr(sW), '4')
    l('s_and_b32', sr(sT0), sr(sW), '1')
    l('s_lshr_b32', sr(sT1), sr(sW), '1')
    l('s_lshl_b32', sr(sT2), sr(sRB), '1')
    l('s_add_u32', sr(sT2), sr(sT2), sr(sT0))
    l('s_mul_i32', sr(sT2), sr(sT2), '144')
    l('s_lshl_b32', sr(sT3), sr(sT1), '1')
    l('s_add_u32', sr(sT2), sr(sT2), sr(sT3))
    l('s_lshl_b32', sr(sA), sr(sT2), '10')
    l('s_lshl_b32', sr(sT2), sr(sT0), '2')
    l('s_add_u32', sr(sT2), sr(sT2), sr(sT3))
    l('s_lshl_b32', sr(sMa), sr(sT2), '10')
    l('s_lshl_b32', sr(sMb), sr(sW), '11')
    l('s_add_u32', sr(sMb), sr(sMb), '8192')
    l('s_lshl_b32', sr(sBo), sr(sCT), '7')
    l('v_lshlrev_b32', vr(vA), '4', vr(vLane))
    l('v_lshrrev_b32', vr(t), '3', vr(vLane))
    l('s_lshl_b32', sr(sT2), sr(sW), '4')
    l('v_add_u32', vr(t), sr(sT2), vr(t))
    l('v_lshlrev_b32', vr(t), '10', vr(t))
    l('v_and_b32', vr(t + 1), '7', vr(vLane))
    l('v_lshrrev_b32', vr(t + 2), '2', vr(vLane))
    l('v_and_b32', vr(t + 2), '4', vr(t + 2))
    l('v_xor_b32', vr(t + 1), vr(t + 1), vr(t + 2))
    l('v_lshl_add_u32', vr(vB), vr(t + 1), '4', vr(t))
    l.raw('  s_waitcnt lgkmcnt(0)'); l.pos += 1
    srd(l, S_H, 22, H_BYTES)
    srd(l, S_WD, 16, 1792 * 1024)
    srd(l, S_WO, 8, 512 * 1024)
    def dma(st):
        base = (st % D2) * SLOT
        for e in range(2):
            l('s_add_u32', 'm0', sr(sMb), str(base + e * 1024))
            if st < 28:
                l('s_add_u32', sr(sT0), sr(sBo), str(st * 65536 + e * 8192))
                l('buffer_load_dwordx4', vr(vB), sr(S_WD, 4), sr(sT0), mods='offen lds')
            else:
                l('s_add_u32', sr(sT0), sr(sBo), str((st - 28) * 65536 + e * 8192))
                l('buffer_load_dwordx4', vr(vB), sr(S_WO, 4), sr(sT0), mods='offen lds')
        for e in range(2):
            l('s_add_u32', 'm0', sr(sMa), str(base + e * 1024))
            l('s_add_u32', sr(sT0), sr(sA), str(st * 4096 + e * 1024))
            l('buffer_load_dwordx4', vr(vA), sr(S_H, 4), sr(sT0), mods='offen lds', tag=('dma', st) if e == 1 else None)
    issued = 0
    while issued < D2:
        dma(issued); issued += 1
    for st in range(NST):
        l.wait_tag(('dma', st))
        l.barrier()
        while issued < NST and issued - D2 < freed_at[st]:
            dma(issued); issued += 1
    l.raw('  s_endpgm')
    return a, l
```

```python
import sys
from asmfw import *
import k1, k2

def kd(name, vg, sg):
    return f""".section .rodata,"a"
.p2align 6
.amdhsa_kernel {name}
  .amdhsa_next_free_vgpr {vg}
  .amdhsa_next_free_sgpr {sg}
  .amdhsa_accum_offset {vg}
  .amdhsa_group_segment_fixed_size 0
  .amdhsa_kernarg_size 80
  .amdhsa_user_sgpr_count 2
  .amdhsa_user_sgpr_kernarg_segment_ptr 1
  .amdhsa_system_sgpr_workgroup_id_x 1
.end_amdhsa_kernel
"""

HEADER = """; Fused LN + linear-attention + GEGLU FFN block for gfx950 (generated by gen/gen.py; hand-designed schedule)
; @launch kernel=k1_kernel grid=(256,1,1) block=(512,1,1) lds=163840
; @launch kernel=k2_kernel grid=(256,1,1) block=(512,1,1) lds=163840
.amdgcn_target "amdgcn-amd-amdhsa--gfx950"
.text
"""

def main(out):
    a = Asm()
    k1.k1_prologue(a, 16384)
    e = a.fork(); o = a.fork()
    e.label('L_k1_E'); e.nop(1)
    k1.K1('E', e).main()
    o.label('L_k1_O'); o.nop(1)
    k1.K1('O', o).main()
    c, l = k2.k2_gen()
    txt = HEADER
    txt += ".globl k1_kernel\n.p2align 8\n.type k1_kernel,@function\nk1_kernel:\n"
    txt += a.text() + e.text() + o.text() + "L_k1_exit:\n  s_endpgm\n"
    txt += ".globl k2_kernel\n.p2align 8\n.type k2_kernel,@function\nk2_kernel:\n"
    txt += c.text() + l.text() + "L_k2_exit:\n  s_endpgm\n"
    txt += ".fill 64, 4, 0xBF800000\n"
    txt += kd('k1_kernel', 256, 96) + kd('k2_kernel', 128, 72)
    open(out, 'w').write(txt)
    print('insts: prologue %d E %d O %d | k2 cons %d load %d ; nops: E %d O %d c %d l %d' % (a.ninst, e.ninst - a.ninst, o.ninst - a.ninst, c.ninst, l.ninst, e.nops, o.nops, c.nops, l.nops), file=sys.stderr)

main(sys.argv[1] if len(sys.argv) > 1 else 'out.s')
```

```python
import re

REG_RE = re.compile(r'^(-|\|)?([vsa])(\d+)\|?$')
RNG_RE = re.compile(r'^([vsa])\[(\d+):(\d+)\]$')

def regs_of(op):
    op = op.strip()
    if op.startswith('-'):
        op = op[1:]
    if op.startswith('abs(') and op.endswith(')'):
        op = op[4:-1]
    if op.startswith('|') and op.endswith('|'):
        op = op[1:-1]
    m = RNG_RE.match(op)
    if m:
        return [m.group(1) + str(i) for i in range(int(m.group(2)), int(m.group(3)) + 1)]
    m = re.match(r'^([vsa])(\d+)$', op)
    if m:
        return [op]
    if op == 'vcc':
        return ['vcc']
    if op == 'exec':
        return ['exec']
    if op == 'm0':
        return ['m0']
    if op == 'scc':
        return ['scc']
    return []

def vr(a, n=1):
    return 'v%d' % a if n == 1 else 'v[%d:%d]' % (a, a + n - 1)
def sr(a, n=1):
    return 's%d' % a if n == 1 else 's[%d:%d]' % (a, a + n - 1)

TRANS = ('v_exp_f32', 'v_log_f32', 'v_rcp_f32', 'v_rsq_f32', 'v_sqrt_f32', 'v_sin_f32', 'v_cos_f32')

class Op:
    __slots__ = ('text', 'kind', 'rd', 'wr', 'tag', 'passes', 'cread')
    def __init__(s, text, kind, rd, wr, tag=None, passes=0, cread=()):
        s.text = text; s.kind = kind; s.rd = rd; s.wr = wr; s.tag = tag; s.passes = passes; s.cread = cread

def mkop(mn, *ops, mods='', tag=None):
    ops = [str(o) for o in ops]
    text = mn + ' ' + ', '.join(ops) + ((' ' + mods) if mods else '')
    R = lambda lst: [r for o in lst for r in regs_of(o)]
    if mn.startswith('v_mfma'):
        passes = 8 if '32x32' in mn else 4
        return Op(text, 'mfma', R(ops[1:]), R(ops[:1]), tag, passes, cread=R(ops[3:4]))
    if mn.startswith('v_cmp'):
        return Op(text, 'valu', R(ops[1:]), R(ops[:1]), tag)
    if mn.startswith('v_permlane'):
        return Op(text, 'perm', R(ops), R(ops), tag)
    if mn.startswith('v_readfirstlane') or mn.startswith('v_readlane'):
        return Op(text, 'readlane', R(ops[1:]), R(ops[:1]), tag)
    if mn.startswith('v_'):
        rd = R(ops[1:])
        if mn.startswith('v_fmac') or mn.startswith('v_dot2c') or mn in ('v_pk_fmac_f16',):
            rd = rd + R(ops[:1])
        if mn.startswith('v_cndmask') and len(ops) == 3:
            rd = rd + ['vcc']
        wr = R(ops[:1])
        if mn in ('v_add_co_u32', 'v_sub_co_u32', 'v_addc_co_u32'):
            wr = R(ops[:2]); rd = R(ops[2:])
        kind = 'trans' if any(mn.startswith(t) for t in TRANS) else 'valu'
        if '_dpp' in mn or 'row_' in mods or 'quad_perm' in mods:
            kind = 'dpp'
        return Op(text, kind, rd, wr, tag)
    if mn.startswith('ds_read'):
        return Op(text, 'ds_read', R(ops[1:]), R(ops[:1]), tag)
    if mn.startswith('ds_write') or mn.startswith('ds_add'):
        return Op(text, 'ds_write', R(ops), [], tag)
    if mn.startswith('buffer_load') and ' lds' in (' ' + mods):
        return Op(text, 'dma', R(ops) + ['m0'], [], tag)
    if mn.startswith('buffer_load') or mn.startswith('global_load'):
        return Op(text, 'vm_load', R(ops[1:]), R(ops[:1]), tag)
    if mn.startswith('buffer_store') or mn.startswith('global_store'):
        return Op(text, 'vm_store', R(ops), [], tag)
    if mn.startswith('buffer_atomic') or mn.startswith('global_atomic'):
        if 'sc0' in mods:
            return Op(text, 'vm_load', R(ops[1:]), R(ops[:1]), tag)
        return Op(text, 'vm_store', R(ops), [], tag)
    if mn.startswith('s_load') or mn.startswith('s_memtime') or mn.startswith('s_memrealtime'):
        return Op(text, 'smem', R(ops[1:]), R(ops[:1]), tag)
    if mn.startswith('s_cmp') or mn.startswith('s_bitcmp'):
        return Op(text, 'salu', R(ops), ['scc'], tag)
    if mn in ('s_barrier', 's_setprio', 's_sleep', 's_nop', 's_endpgm') or mn.startswith('s_cbranch') or mn == 's_branch' or mn == 's_waitcnt':
        return Op(text, 'ctl', [], [], tag)
    if mn.startswith('s_'):
        rd = R(ops[1:])
        wr = R(ops[:1])
        if mn.startswith('s_cselect') or mn.startswith('s_addc') or mn.startswith('s_subb'):
            rd = rd + ['scc']
        if 'saveexec' in mn:
            rd = rd + ['exec']; wr = wr + ['exec']
        return Op(text, 'salu', rd, wr + ['scc'], tag)
    raise ValueError('unknown mnemonic ' + mn)

class Asm:
    def __init__(s):
        s.out = []
        s.pos = 0
        s.reset_state()
        s.nops = 0
        s.ninst = 0
    def reset_state(s):
        s.vm_issued = 0; s.vm_retired = 0
        s.lg_issued = 0; s.lg_retired = 0
        s.pend = {}
        s.tags = {}
        s.w_valu = {}; s.w_trans = {}; s.w_mfma = {}; s.r_mfmac = {}; s.w_vsgpr = {}; s.st_data = {}; s.w_m0 = -100
        s.w_salu = {}
        s.last_dsw = -1
        s.w_dot = {}
    def raw(s, line):
        s.out.append(line)
    def label(s, name):
        s.out.append(name + ':')
    def comment(s, t):
        s.out.append('; ' + t)
    def _emit(s, text):
        s.out.append('  ' + text); s.pos += 1; s.ninst += 1
    def nop(s, n):
        while n > 0:
            k = min(n, 16)
            s.out.append('  s_nop %d' % (k - 1)); s.pos += k; n -= k; s.nops += 1; s.ninst += 1
    def waitcnt(s, vm=None, lg=None):
        parts = []
        if vm is not None:
            vm = min(vm, 63)
            parts.append('vmcnt(%d)' % vm); s.vm_retired = max(s.vm_retired, s.vm_issued - vm)
        if lg is not None:
            lg = min(lg, 15)
            parts.append('lgkmcnt(%d)' % lg); s.lg_retired = max(s.lg_retired, s.lg_issued - lg)
        if parts:
            s._emit('s_waitcnt ' + ' '.join(parts))
    def need(s, items):
        vm = None; lg = None
        for c, idx in items:
            if c == 'vm' and idx >= s.vm_retired:
                n = s.vm_issued - 1 - idx
                vm = n if vm is None else min(vm, n)
            if c == 'lg' and idx >= s.lg_retired:
                n = s.lg_issued - 1 - idx
                lg = n if lg is None else min(lg, n)
        if vm is not None or lg is not None:
            s.waitcnt(vm, lg)
    def wait_tag(s, *tags):
        s.need([s.tags[t] for t in tags if t in s.tags])
    def tag_retired(s, tag):
        c, idx = s.tags[tag]
        return idx < (s.vm_retired if c == 'vm' else s.lg_retired)
    def emit(s, op):
        if isinstance(op, str):
            s.raw(op); return
        items = []
        for r in list(op.rd) + list(op.wr):
            if r in s.pend:
                items.append(s.pend[r])
        s.need(items)
        for r in list(op.rd) + list(op.wr):
            if r in s.pend:
                del s.pend[r]
        req = 0
        def gap(p, n):
            nonlocal req
            have = s.pos - p - 1
            if n - have > req:
                req = n - have
        k = op.kind
        isvalu = k in ('valu', 'trans', 'perm', 'readlane', 'dpp')
        ismem = k in ('ds_read', 'ds_write', 'dma', 'vm_load', 'vm_store')
        for r in op.rd:
            if k == 'mfma' and r in s.w_valu: gap(s.w_valu[r], 2)
            if r in s.w_mfma:
                p, passes, dfirst, dn = s.w_mfma[r]
                n = 12 if passes == 8 else 8
                if k == 'mfma':
                    if r in op.cread and op.wr and op.wr[0] == dfirst and len(op.wr) == dn and set(op.cread) == set(op.wr) and op.passes == passes and r not in (set(op.rd) - set(op.cread)):
                        pass
                    elif r in op.cread and r not in [x for x in op.rd if x not in op.cread]:
                        gap(p, 10 if passes == 8 else 6)
                    else:
                        gap(p, n)
                elif isvalu or ismem:
                    gap(p, n)
            if isvalu and k != 'trans' and r in s.w_trans: gap(s.w_trans[r], 1)
            if isvalu and r in s.w_vsgpr and k != 'readlane': gap(s.w_vsgpr[r], 2)
            if k == 'readlane' and r in s.w_vsgpr: gap(s.w_vsgpr[r], 4)
            if ismem and r in s.w_vsgpr: gap(s.w_vsgpr[r], 5)
            if k == 'salu' and r in s.w_vsgpr: gap(s.w_vsgpr[r], 2)
            if k == 'readlane' and r in s.w_valu: gap(s.w_valu[r], 1)
            if r in s.w_dot and not op.text.startswith('v_dot'): gap(s.w_dot[r], 3)
            if k in ('perm', 'dpp') and r in s.w_valu: gap(s.w_valu[r], 2)
            if k == 'dma' and r == 'm0': gap(s.w_m0, 1)
        for r in op.wr:
            if r in s.w_mfma and (isvalu or k in ('ds_read', 'vm_load')):
                p, passes, _, _ = s.w_mfma[r]
                gap(p, 12 if passes == 8 else 8)
            if r in s.w_mfma and k == 'mfma':
                p, passes, dfirst, dn = s.w_mfma[r]
                if not (set(op.cread) == set(op.wr) and op.wr[0] == dfirst and len(op.wr) == dn):
                    gap(p, 10 if passes == 8 else 6)
            if isvalu and r in s.r_mfmac:
                p, passes = s.r_mfmac[r]
                gap(p, 7 if passes == 8 else 3)
            if r in s.st_data:
                gap(s.st_data[r], 2 if isvalu else 1)
        if req > 0:
            s.nop(req)
        p = s.pos
        s._emit(op.text)
        for r in op.wr:
            s.w_valu.pop(r, None); s.w_trans.pop(r, None); s.w_mfma.pop(r, None); s.w_vsgpr.pop(r, None)
        if isvalu:
            for r in op.wr:
                if r.startswith('v') and r != 'vcc':
                    s.w_valu[r] = p
                    if k == 'trans': s.w_trans[r] = p
                else:
                    s.w_vsgpr[r] = p
        for r in op.wr: s.w_dot.pop(r, None)
        if op.text.startswith('v_dot'):
            for r in op.wr: s.w_dot[r] = p
        if k == 'mfma':
            for r in op.wr:
                s.w_mfma[r] = (p, op.passes, op.wr[0], len(op.wr))
            for r in op.cread:
                s.r_mfmac[r] = (p, op.passes)
        if k == 'salu' and 'm0' in op.wr:
            s.w_m0 = p
        if k in ('ds_read', 'ds_write'):
            idx = s.lg_issued; s.lg_issued += 1
            for r in op.wr: s.pend[r] = ('lg', idx)
            if op.tag is not None: s.tags[op.tag] = ('lg', idx)
            if k == 'ds_write': s.last_dsw = idx
        if k in ('dma', 'vm_load', 'vm_store'):
            idx = s.vm_issued; s.vm_issued += 1
            for r in op.wr: s.pend[r] = ('vm', idx)
            if op.tag is not None: s.tags[op.tag] = ('vm', idx)
        if k == 'vm_store' or k == 'ds_write':
            if 'x4' in op.text or 'x3' in op.text or 'b128' in op.text:
                for r in op.rd:
                    if r.startswith('v'): s.st_data[r] = p
        if k == 'smem':
            raise ValueError('emit smem via raw() with explicit waits')
    def __call__(s, mn, *ops, mods='', tag=None):
        s.emit(mkop(mn, *ops, mods=mods, tag=tag))
    def stamp(s, i, vreg=0, real=False):
        if not getattr(s, 'stamps', False): return
        if getattr(s, 'lstamps', False) and i not in (7, 8, 9): return
        s.raw('  %s s[96:97]' % ('s_memrealtime' if real else 's_memtime'))
        s.raw('  s_waitcnt lgkmcnt(0)')
        s.lg_retired = s.lg_issued
        s.raw('  v_writelane_b32 v%d, s96, %d' % (vreg, i))
        s.pos += 3
    LPAIRS = [18, 8, 16, 14]
    def lstamp(s, i):
        if not getattr(s, 'lstamps', False): return
        s.raw('  s_memtime s[%d:%d]' % (s.LPAIRS[i], s.LPAIRS[i] + 1))
    def lstamp_collect(s, vreg=0):
        if not getattr(s, 'lstamps', False): return
        s.raw('  s_waitcnt lgkmcnt(0)')
        for i, p in enumerate(s.LPAIRS):
            s.raw('  v_writelane_b32 v%d, s%d, %d' % (vreg, p, 30 + i))
    def stamp_out(s, ws_lo, wg_sreg, wave_sreg, off, vreg=0, tmpv=1, tmps=98):
        if not getattr(s, 'stamps', False): return
        s.raw('  s_lshl_b32 s%d, %s, 3' % (tmps, wg_sreg))
        s.raw('  s_add_u32 s%d, s%d, %s' % (tmps, tmps, wave_sreg))
        s.raw('  s_lshl_b32 s%d, s%d, 8' % (tmps, tmps))
        s.raw('  s_add_u32 s%d, s%d, 0x%x' % (tmps, tmps, off))
        s.raw('  v_mbcnt_lo_u32_b32 v%d, -1, 0' % tmpv)
        s.raw('  v_mbcnt_hi_u32_b32 v%d, -1, v%d' % (tmpv, tmpv))
        s.raw('  v_lshlrev_b32 v%d, 2, v%d' % (tmpv, tmpv))
        s.raw('  v_add_u32 v%d, s%d, v%d' % (tmpv, tmps, tmpv))
        s.raw('  s_nop 4')
        s.raw('  global_store_dword v%d, v%d, s[%d:%d]' % (tmpv, vreg, ws_lo, ws_lo + 1))
        s.raw('  s_waitcnt vmcnt(0)')
    def barrier(s):
        s._emit('s_barrier')
    def fork(s):
        import copy
        n = Asm()
        for k, v in s.__dict__.items():
            if k == 'out': continue
            setattr(n, k, copy.deepcopy(v))
        n.out = []
        return n
    def text(s):
        return '\n'.join(s.out) + '\n'
```

```python
from asmfw import *
import struct, os
EXP = os.environ.get('EXP', '').split(',')
def P(name, default):
    return int(os.environ.get(name, default))

def f2u(x):
    return struct.unpack('<I', struct.pack('<f', x))[0]
def lit(x):
    return '0x%08x' % f2u(x)

LOG2E = 1.4426950408889634
K0 = -2.0 * 0.7978845608028654 * LOG2E
K1C = K0 * 0.044715

SLOT = 16384
H_BYTES = 64 * 144 * 1024
ACC_OFF = H_BYTES
STAT_OFF = 0x910000
CSP_OFF = 0x914000
ARENA = 0x970000
WS_BYTES = 0x980000
D = 8
D2 = 6
AHEAD = P('AHEAD', 4)
KVL = D2 * SLOT
CTB = KVL + 32768
DUMMY = CTB + 2048
RSB = DUMMY + 2048
FLG = RSB + 512
SCR = 139264
OOB = 0x7ffffff0
MF = 'v_mfma_f32_32x32x16_bf16'
MF8 = 'v_mfma_f32_32x32x8_bf16'
MF16 = 'v_mfma_f32_16x16x32_bf16'

S_X, S_Q, S_G, S_U, S_H, S_DBG = 24, 28, 32, 36, 40, 44
sW, sM, sC, sI, sP = 48, 49, 50, 51, 52
sXoff = 53; sM0 = 54; sM0b = 55; sFo = 56; sFo2 = 57; sQo = 58; sHb = 59
sT0, sT1, sT2, sT3 = 60, 61, 62, 63
sMask = 64
sHq = 66; sHq2 = 67
S_T0 = 68; S_T1 = 72
S_WD, S_WO = 68, 72
sHo = 76; sSlot = 77; sB = 78; sTyp = 79
sPC = 80
sScr = 10
sW0a, sW0b = 11, 18
sRotE = 3
sRot, sRotP = 12, 13
sO0, sO1, sO2, sO3 = 4, 5, 6, 7
sSpin = 82; sJ = 83
sAcc = 84; sAccC = 85; sRowCnt = 86; sColCnt = 87; sDoneC = 88
sPollA = 89; sPollB = 90; sArow = 91; sAcol = 92; sT4 = 93; sT5 = 94; sCT = 95
sF0, sF1, sF2, sF3, sF4 = 3, 98, 99, 100, 101
sT6 = 99; sT7 = 100; sT8 = 101

vSt = 0
vStE = 47
vL16 = 1; vK1 = 2; vK0 = 3; vCC = 4; vRS = 5
vOnes = 5
vLq = 6
vDa, vDb, vDc, vDd = 8, 9, 10, 11
vTA = 12
vP = 20
vT4 = 28
vG = 32
vSel = 32
vCs = 36
vXE = 44
vWE = 46
vW = 48; vAcc = 64; vX = 128
vXa = 20

def acc(setn, unit): return vAcc + setn * 32 + unit * 16
def xfr(kk): return vX + kk * 4

def rot_off(a, rotreg, t, mul, base, imm=0):
    a('s_add_u32', sr(sT0), sr(rotreg), str(t))
    a('s_and_b32', sr(sT0), sr(sT0), '7')
    a('s_mul_i32', sr(sT0), sr(sT0), str(mul))
    a('s_add_u32', sr(sT0), sr(sT0), sr(base))
    if imm: a('s_add_u32', sr(sT0), sr(sT0), str(imm))

def x_dma(a, t, idx):
    base = (idx % D) * SLOT
    for e in range(2):
        a('s_add_u32', 'm0', sr(sM0b), str(base + e * 1024))
        rot_off(a, sRotE if t == 0 and idx == 0 else sRot, t, 128, sXoff)
        a('buffer_load_dwordx4', vr(vDc + e), sr(S_X, 4), sr(sT0), mods='offen lds', tag=('dma', idx) if e == 1 else None)

def srd(a, d, lo, size):
    a('s_mov_b32', sr(d), sr(lo)); a('s_mov_b32', sr(d + 1), sr(lo + 1))
    a('s_mov_b32', sr(d + 2), hex(size)); a('s_mov_b32', sr(d + 3), '0x20000')

def k1_prologue(a, code_bytes):
    a.raw('  s_cmp_ge_u32 s2, 256')
    a.raw('  s_cbranch_scc1 L_k1_exit')
    if getattr(a, 'stamps', False):
        a.raw('  s_memtime s[96:97]')
        a.raw('  s_memrealtime s[98:99]')
    a.raw('  s_load_dwordx16 s[4:19], s[0:1], 0')
    a.raw('  s_load_dwordx4 s[20:23], s[0:1], 64')
    a.raw('  s_getpc_b64 s[%d:%d]' % (sPC, sPC + 1))
    a.label('L_k1_pc')
    L = vTA
    t = vP
    a('v_lshlrev_b32', vr(vP + 7), '4', 'v0')
    a('v_and_b32', vr(L), '63', 'v0')
    a('v_lshrrev_b32', vr(t), '6', 'v0')
    a('v_lshlrev_b32', vr(vL16), '4', vr(L))
    a('v_readfirstlane_b32', sr(sW), vr(t))
    a('s_and_b32', sr(sT0), 's2', '7')
    a('s_lshr_b32', sr(sSlot), 's2', '3')
    a('s_lshr_b32', sr(sT1), sr(sT0), '1')
    a('s_and_b32', sr(sB), sr(sT0), '1')
    a('s_lshr_b32', sr(sT2), sr(sSlot), '2')
    a('s_lshl_b32', sr(sT3), sr(sB), '3')
    a('s_add_u32', sr(sT2), sr(sT2), sr(sT3))
    a('s_mov_b32', sr(sJ), sr(sT2))
    a('s_and_b32', sr(sTyp), sr(sT2), '1')
    a('s_cmp_eq_u32', sr(sTyp), '0')
    a.raw('  s_mov_b32 s%d, L_k1_E-L_k1_pc' % sT3); a.pos += 1
    a.raw('  s_mov_b32 s%d, L_k1_O-L_k1_pc' % sT4); a.pos += 1
    a('s_cselect_b32', sr(sT3), sr(sT3), sr(sT4))
    a('s_add_u32', sr(sPC), sr(sPC), sr(sT3))
    a('s_addc_u32', sr(sPC + 1), sr(sPC + 1), '0')
    a('s_lshr_b32', sr(sP), sr(sT2), '1')
    a('s_lshl_b32', sr(sI), sr(sT1), '2')
    a('s_and_b32', sr(sT2), sr(sSlot), '3')
    a('s_add_u32', sr(sI), sr(sI), sr(sT2))
    a('s_and_b32', sr(sM), sr(sW), '3')
    a('s_lshr_b32', sr(sC), sr(sW), '2')
    a('s_and_b32', sr(sT0), sr(sI), '3')
    a('s_lshl_b32', sr(sT0), sr(sT0), '1')
    a('s_add_u32', sr(sRotE), sr(sT0), sr(sJ))
    a('s_and_b32', sr(sRotE), sr(sRotE), '7' if P('ROT', 0) else '0')
    a('s_lshl_b32', sr(sXoff), sr(sI), '17')
    a('s_lshl_b32', sr(sM0), sr(sW), '10')
    a('s_lshl_b32', sr(sM0b), sr(sW), '11')
    a('s_lshl_b32', sr(sQo), sr(sP), '7')
    a('v_lshrrev_b32', vr(t), '3', vr(L))
    a('s_lshl_b32', sr(sT0), sr(sW), '4')
    a('v_add_u32', vr(t + 5), sr(sT0), vr(t))
    a('v_lshlrev_b32', vr(t + 3), '10', vr(t + 5))
    a('v_and_b32', vr(t + 1), '7', vr(L))
    a('v_lshrrev_b32', vr(t + 2), '4', vr(L))
    a('v_xor_b32', vr(t + 2), vr(t + 1), vr(t + 2))
    a('v_lshl_add_u32', vr(vDc), vr(t + 2), '4', vr(t + 3))
    a('v_xor_b32', vr(vDd), '64', vr(vDc))
    a('v_add_u32', vr(vDd), '0x2000', vr(vDd))
    a('v_lshrrev_b32', vr(t + 2), '2', vr(L))
    a('v_and_b32', vr(t + 2), '4', vr(t + 2))
    a('v_xor_b32', vr(t + 1), vr(t + 1), vr(t + 2))
    a('v_lshlrev_b32', vr(t + 1), '4', vr(t + 1))
    a('s_lshl_b32', sr(sT0), sr(sW), '3')
    a('v_add_u32', vr(t + 3), sr(sT0), vr(t))
    a('v_mul_u32_u24', vr(vDa), '3584', vr(t + 3))
    a('v_add_u32', vr(vDa), vr(vDa), vr(t + 1))
    a('s_lshl_b32', sr(sT0), sr(sM), '4')
    a('v_add_u32', vr(t + 5), sr(sT0), vr(t))
    a('s_cmp_eq_u32', sr(sTyp), '0')
    a('s_cselect_b64', 'vcc', '-1', '0')
    a('v_cndmask_b32', vr(t + 3), vr(t + 3), vr(t + 5))
    a('v_mul_u32_u24', vr(vDb), '3072', vr(t + 3))
    a('v_add_u32', vr(vDb), vr(vDb), vr(t + 1))
    a('s_mul_i32', sr(sT0), sr(sP), '224')
    a('s_and_b32', sr(sT1), sr(sP), '1')
    a('s_lshl_b32', sr(sT1), sr(sT1), '1')
    a('s_add_u32', sr(sT1), sr(sT1), sr(sTyp))
    a('s_mov_b32', sr(sT2), '0'); a('s_mov_b32', sr(sT3), '64')
    a('s_cmp_eq_u32', sr(sT1), '1'); a('s_cselect_b32', sr(sT2), '128', sr(sT2)); a('s_cselect_b32', sr(sT3), '192', sr(sT3))
    a('s_cmp_eq_u32', sr(sT1), '2'); a('s_cselect_b32', sr(sT2), '96', sr(sT2)); a('s_cselect_b32', sr(sT3), '160', sr(sT3))
    a('s_cmp_eq_u32', sr(sT1), '3'); a('s_cselect_b32', sr(sT2), '32', sr(sT2)); a('s_cselect_b32', sr(sT3), '0', sr(sT3))
    a('s_add_u32', sr(sT2), sr(sT2), sr(sT0))
    a('s_add_u32', sr(sT3), sr(sT3), sr(sT0))
    a('s_lshl_b32', sr(sFo), sr(sT2), '1')
    a('s_lshl_b32', sr(sFo2), sr(sT3), '1')
    a('global_load_dwordx4', vr(vX + 112, 4), vr(vP + 7), sr(sPC, 2))
    a.raw('  s_waitcnt lgkmcnt(0)')
    a.pos += 1
    srd(a, S_X, 4, 2048 * 1024)
    if not P('EARLYPRE', 1): x_dma(a, 0, 0)
    if getattr(a, 'stamps', False):
        a.raw('  v_writelane_b32 v%d, s96, 0' % vStE)
        a.raw('  v_writelane_b32 v%d, s98, 1' % vStE)
    srd(a, S_Q, 6, 512 * 3072)
    srd(a, S_G, 12, 512 * 3584)
    srd(a, S_U, 14, 512 * 3584)
    a('s_mov_b32', sr(sRot), sr(sRotE))
    a('s_add_u32', sr(sRotP), sr(sRotE), sr(sC))
    a('s_cmp_eq_u32', sr(sTyp), '0')
    a.raw('  s_cbranch_scc0 L_k1_O'); a.pos += 1

def group_flags(ops):
    out = []
    i = 0
    while i < len(ops):
        op = ops[i]
        if isinstance(op, Op) and (op.text.startswith('s_cmp') or (op.text.startswith('v_cmp') and 'vcc' in op.wr)):
            flag = 'scc' if op.text.startswith('s_cmp') else 'vcc'
            j = i + 1; last = i
            while j < len(ops) and isinstance(ops[j], Op):
                o2 = ops[j]
                if flag in o2.rd: last = j
                if flag in o2.wr and flag == 'vcc': break
                if flag == 'scc' and o2.kind == 'salu' and not o2.text.startswith('s_cselect') and not o2.text.startswith('s_mov'): break
                j += 1
                if j - i > 8: break
            out.append(('G', ops[i:last + 1]))
            i = last + 1
        else:
            out.append(op); i += 1
    return out

class K1:
    def __init__(s, typ, a):
        s.a = a; s.typ = typ
        s.fq = []
        s.freed = 0
        s.issued = 0 if P('EARLYPRE', 1) else 1
        s.landed = 0
        s.stage_reads = {}
        s.stage_done = set()
        s.prebar = []; s.postbar = []
        s.rounds = ['GU0', 'GU1', 'QP'] if typ == 'E' else (['KV', 'P2', 'GU0'] if P('ORDO', 1) else ['KV', 'GU0', 'P2'])
        s.stages = []
        s.wst = {}; s.xst = {}
        for t in range(8):
            s.xst[t] = len(s.stages); s.stages.append(('X', t))
            s.wst[(0, t)] = len(s.stages); s.stages.append((s.rounds[0], t))
        for r in (1, 2):
            n = 4 if s.rounds[r] in ('QP', 'P2') else 8
            for t in range(n):
                s.wst[(r, t)] = len(s.stages); s.stages.append((s.rounds[r], t))
        s.nlab = 0
        s.cur = -1
        s.ool = []
        s.p2ready = False
        s.dq = []; s.dqh = 0
        s.slot = {}; s.occ = [None] * D
        if not P('EARLYPRE', 1): s.slot = {0: 0}; s.occ[0] = 0

    def pair(s, r): return s.rounds[r] in ('QP', 'P2')

    def dma(s, idx, only=None):
        a = s.a
        kind, t = s.stages[idx]
        base = s.slot[idx] * SLOT
        tag = ('dma', idx)
        lst = []
        def one(m0reg, m0imm, voff, srd_, off, tg=None):
            lst.append((m0reg, m0imm, voff, srd_, off, tg))
        if kind == 'X':
            one(sM0b, 0, vDc, S_X, (sRot, t, 128, sXoff, 0))
            one(sM0b, 1024, vDd, S_X, (sRot, t, 128, sXoff, 0), tag)
        elif kind in ('GU0', 'GU1'):
            fo = sFo if kind == 'GU0' else sFo2
            one(sM0, 0, vDa, S_G, (sRot, t, 64 * 3584, fo, 0))
            one(sM0, 8192, vDa, S_U, (sRot, t, 64 * 3584, fo, 0), tag)
        elif kind == 'KV':
            one(sM0, 0, vDb, S_Q, (sRot, t, 64 * 3072, sQo, 1024))
            one(sM0, 8192, vDb, S_Q, (sRot, t, 64 * 3072, sQo, 2048), tag)
        elif kind == 'QP':
            one(sM0b, 0, vDb, S_Q, (sRotP, 2 * t, 64 * 3072, sQo, 0))
            one(sM0b, 1024, vDb, S_Q, (sRotP, 2 * t, 64 * 3072, sQo, 8 * 3072), tag)
        elif kind == 'P2':
            if not s.p2ready:
                s.p2_voffs()
            one(sM0, 0, vDc, S_G, (sRotP, 2 * t, 64 * 3584, sFo2, 0))
            one(sM0, 8192, vDd, S_U, (sRotP, 2 * t, 64 * 3584, sFo2, 0), tag)
        else:
            raise ValueError
        for j, (m0reg, m0imm, voff, srd_, off, tg) in enumerate(lst):
            if only is not None and j != only: continue
            if 'nodma' in EXP and idx > 3:
                if tg is not None: a.tags[tg] = ('vm', -1)
                continue
            a('s_add_u32', 'm0', sr(m0reg), str(base + m0imm))
            rot_off(a, off[0], off[1], off[2], off[3], off[4])
            a('buffer_load_dwordx4', vr(voff), sr(srd_, 4), sr(sT0), mods='offen lds', tag=tg)

    def p2_voffs(s):
        a = s.a
        assert all(k != 'X' for k, _ in s.stages[s.issued:])
        a('v_lshrrev_b32', vr(vDc), '6', vr(vL16))
        a('s_lshl_b32', sr(sT0), sr(sM), '4')
        a('v_add_u32', vr(vDc), sr(sT0), vr(vDc))
        a('v_mul_u32_u24', vr(vDc), '3584', vr(vDc))
        a('v_and_b32', vr(vDd), '48', vr(vL16))
        a('v_add_u32', vr(vDc), vr(vDc), vr(vDd))
        a('v_xor_b32', vr(vDd), '32', vr(vDc))
        s.p2ready = True

    def alloc(s, idx):
        n = D if idx < 16 else D2
        for k in range(n):
            j = (s.lastslot + 1 + k) % n if hasattr(s, 'lastslot') else k
            if s.occ[j] is None or s.occ[j] < s.freed:
                s.occ[j] = idx; s.slot[idx] = j; s.lastslot = j
                return True
        return False

    def issue_more(s, now=False):
        while s.issued < len(s.stages) and s.issued - s.landed < AHEAD and s.alloc(s.issued):
            if now:
                s.dma(s.issued)
            else:
                s.dq.append(s.issued)
            s.issued += 1

    def dma_half(s):
        if not s.dq: return
        idx = s.dq[0]
        h = s.dqh
        s.dma(idx, only=h)
        if h == 1:
            s.dq.pop(0); s.dqh = 0
        else:
            s.dqh = 1

    def dma_flush(s, upto):
        while s.dq and s.dq[0] <= upto:
            s.dma_half()

    def bar(s, idx):
        a = s.a
        if idx is not None:
            s.dma_flush(idx)
        if idx is not None and 'nowait' not in EXP:
            a.wait_tag(('dma', idx))
        pb, s.prebar = s.prebar, []
        for f in pb: f()
        a.need([('lg', a.last_dsw)]) if a.last_dsw >= 0 else None
        nfree = s.freed
        while nfree < len(s.stages) and nfree in s.stage_done and all(i < a.lg_retired for i in s.stage_reads.get(nfree, [])):
            nfree += 1
        if 'nobar' not in EXP: a.barrier()
        s.freed = nfree
        if idx is not None: s.landed = idx + 1
        s.issue_more()
        if s.fq and isinstance(s.fq[0], str) and s.fq[0] == 'WAITBAR': s.fq.pop(0)
        pb, s.postbar = s.postbar, []
        for f in pb: f()

    def fill(s, n):
        k = 0
        if 'nofill' in EXP:
            s.fq = [x for x in s.fq if callable(x) or isinstance(x, str)]
        while k < n and s.fq:
            op = s.fq[0]
            if isinstance(op, str) and op == 'WAITBAR':
                return
            if isinstance(op, tuple) and op[0] == 'UNTIL':
                if s.cur < op[1]: return
                s.fq.pop(0); continue
            if isinstance(op, tuple) and op[0] == 'G':
                s.fq.pop(0)
                for o2 in op[1]: s.a.emit(o2)
                k += len(op[1]); continue
            s.fq.pop(0)
            if callable(op): op()
            elif op is None: k += 1
            else:
                s.a.emit(op); k += 1
    def flush(s):
        while s.fq:
            if isinstance(s.fq[0], str) and s.fq[0] == 'WAITBAR':
                s.bar(None)
                continue
            if isinstance(s.fq[0], tuple) and s.fq[0][0] == 'UNTIL':
                s.fq.pop(0); continue
            s.fill(1)

    def w0_spin(s, name, checks):
        a = s.a
        if 'nospin' in EXP:
            for (_, _, _, v) in checks: a('v_readfirstlane_b32', sr(sT2), vr(v))
            return
        regs = [sT2, sT3]
        for k, (_, _, _, v) in enumerate(checks): a('v_readfirstlane_b32', sr(regs[k]), vr(v))
        L = 'L_%s%s' % (name, s.typ)
        a('s_cmp_eq_u32', sr(sW), '0')
        a.raw('  s_cbranch_scc0 %s_ok' % L)
        a.raw('  s_mov_b32 %s, 0' % sr(sSpin))
        a.label(L + '_chk')
        for k, (_, _, tgt, _) in enumerate(checks):
            a.raw('  s_cmp_ge_u32 %s, %d' % (sr(regs[k]), tgt))
            a.raw('  s_cbranch_scc0 %s_spin' % L)
        a.raw('  s_branch %s_ok' % L)
        a.label(L + '_spin')
        a.raw('  s_sleep 8')
        for k, (srd_, soff, _, v) in enumerate(checks):
            a.raw('  buffer_load_dword %s, off, %s, %s sc1' % (vr(v), sr(srd_, 4), sr(soff)))
        a.raw('  s_waitcnt vmcnt(0)')
        for k, (_, _, _, v) in enumerate(checks):
            a.raw('  v_readfirstlane_b32 %s, %s' % (sr(regs[k]), vr(v)))
        a.raw('  s_add_u32 %s, %s, 1' % (sr(sSpin), sr(sSpin)))
        a.raw('  s_cmp_lt_u32 %s, 0x100000' % sr(sSpin))
        a.raw('  s_cbranch_scc1 %s_chk' % L)
        a.label(L + '_ok')
        a.pos += 3
        a.nop(2)

    def all_spin(s, name, srd_, soff, target, vreg):
        a = s.a
        a('v_readfirstlane_b32', sr(sT2), vr(vreg))
        if 'nospin' in EXP: return
        L = 'L_%s%s' % (name, s.typ)
        a('s_cmp_ge_u32', sr(sT2), str(target))
        a.raw('  s_cbranch_scc1 %s_ok' % L)
        a.raw('  s_mov_b32 %s, 0' % sr(sSpin))
        a.label(L + '_spin')
        a.raw('  s_sleep 16')
        a.raw('  buffer_load_dword %s, off, %s, %s sc1' % (vr(vreg), sr(srd_, 4), sr(soff)))
        a.raw('  s_waitcnt vmcnt(0)')
        a.raw('  v_readfirstlane_b32 %s, %s' % (sr(sT2), vr(vreg)))
        a.raw('  s_add_u32 %s, %s, 1' % (sr(sSpin), sr(sSpin)))
        a.raw('  s_cmp_ge_u32 %s, 0x100000' % sr(sSpin))
        a.raw('  s_cbranch_scc1 %s_ok' % L)
        a.raw('  s_cmp_ge_u32 %s, %d' % (sr(sT2), target))
        a.raw('  s_cbranch_scc0 %s_spin' % L)
        a.label(L + '_ok')
        a.pos += 2
        a.nop(2)

    def set_flag(s, vreg, vtmp, flagidx):
        a = s.a
        a('s_cmp_eq_u32', sr(sW), '0')
        a('s_mov_b32', sr(sT3), hex(DUMMY))
        a('s_cselect_b32', sr(sT3), hex(FLG + 4 * flagidx), sr(sT3))
        a('v_mov_b32', vr(vtmp), sr(sT3))
        a('v_mov_b32', vr(vreg), '1')
        a('ds_write_b32', vr(vtmp), vr(vreg))

    def check_all(s, name, vreg, vtmp, flagidx):
        a = s.a
        a('v_mov_b32', vr(vtmp), hex(FLG + 4 * flagidx))
        a('ds_read_b32', vr(vreg), vr(vtmp))
        a('v_readfirstlane_b32', sr(sT2), vr(vreg))
        if 'nospin' in EXP: return
        L = 'L_%s%s' % (name, s.typ)
        a('s_cmp_lg_u32', sr(sT2), '0')
        a.raw('  s_cbranch_scc1 %s_ok2' % L)
        a.raw('  s_mov_b32 %s, 0' % sr(sSpin))
        a.label(L + '_lds')
        a.raw('  s_sleep 1')
        a.raw('  ds_read_b32 %s, %s' % (vr(vreg), vr(vtmp)))
        a.raw('  s_waitcnt lgkmcnt(0)')
        a.raw('  v_readfirstlane_b32 %s, %s' % (sr(sT2), vr(vreg)))
        a.raw('  s_add_u32 %s, %s, 1' % (sr(sSpin), sr(sSpin)))
        a.raw('  s_cmp_ge_u32 %s, 0x1000000' % sr(sSpin))
        a.raw('  s_cbranch_scc1 %s_ok2' % L)
        a.raw('  s_cmp_eq_u32 %s, 0' % sr(sT2))
        a.raw('  s_cbranch_scc1 %s_lds' % L)
        a.label(L + '_ok2')
        a.pos += 2
        a.nop(2)

    def poll(s, srd_, soff, vreg):
        op = Op('buffer_load_dword %s, off, %s, %s sc1' % (vr(vreg), sr(srd_, 4), sr(soff)), 'vm_load',
                regs_of(sr(srd_, 4)) + [sr(soff)], [vr(vreg)])
        s.a.emit(op)

    def tid0(s, t0, t1):
        a = s.a
        a('v_add_u32', vr(t0), sr(sM0), vr(vL16))
        a('v_mov_b32', vr(t1), hex(OOB))
        a('v_cmp_ne_u32', 'vcc', '0', vr(t0))
        a('v_cndmask_b32', vr(t0), vr(t0), vr(t1))
        a('v_mov_b32', vr(t1), '1')

    def signal(s, soffs, t0, t1):
        a = s.a
        s.tid0(t0, t1)
        for so in soffs:
            a('buffer_atomic_add', vr(t1), vr(t0), sr(S_H, 4), sr(so), mods='offen')

    def ep_geglu(s, g, u, nval, hreg, imms):
        ops = []
        o = lambda mn, *x, **k: ops.append(mkop(mn, *x, **k))
        T = vT4
        for fr in range(nval // 8):
            P = vP + 4 * fr
            for b in range(2):
                idx = [fr * 8 + b * 4 + i for i in range(4)]
                for i, r in enumerate(idx): o('v_mul_f32', vr(T + i), vr(g + r), vr(g + r))
                for i, r in enumerate(idx): o('v_fma_f32', vr(T + i), vr(T + i), vr(vK1), vr(vK0))
                for i, r in enumerate(idx): o('v_mul_f32', vr(T + i), vr(g + r), vr(T + i))
                for i, r in enumerate(idx): o('v_exp_f32', vr(T + i), vr(T + i))
                for i, r in enumerate(idx): o('v_mul_f32', vr(u + r), vr(g + r), vr(u + r))
                for i, r in enumerate(idx): o('v_fma_f32', vr(T + i), vr(T + i), vr(vCC), vr(vCC))
                for i, r in enumerate(idx): o('v_rcp_f32', vr(T + i), vr(T + i))
                for i, r in enumerate(idx): o('v_mul_f32', vr(u + r), vr(u + r), vr(T + i))
                o('v_cvt_pk_bf16_f32', vr(P + 2 * b), vr(u + idx[0]), vr(u + idx[1]))
                o('v_cvt_pk_bf16_f32', vr(P + 2 * b + 1), vr(u + idx[2]), vr(u + idx[3]))
            o('s_add_u32', sr(sT1), sr(hreg), str(imms[fr]))
            if 'nost' not in EXP: o('buffer_store_dwordx4', vr(P, 4), vr(vL16), sr(S_H, 4), sr(sT1), mods='offen sc1' if 'plainst' not in EXP else 'offen')
        return ops

    def phi_ops(s, a0, n, scale):
        ops = []
        o = lambda mn, *x, **k: ops.append(mkop(mn, *x, **k))
        T = vT4
        for b in range(n // 4):
            r = [a0 + 4 * b + i for i in range(4)]
            for i in range(4): o('v_mul_f32', vr(r[i]), vr(r[i]), vr(scale(4 * b + i)))
            o('v_cvt_pk_bf16_f32', vr(T + 0), vr(r[0]), vr(r[1]))
            o('v_cvt_pk_bf16_f32', vr(T + 1), vr(r[2]), vr(r[3]))
            o('v_lshlrev_b32', vr(r[0]), '16', vr(T + 0))
            o('v_and_b32', vr(r[1]), '0xffff0000', vr(T + 0))
            o('v_lshlrev_b32', vr(r[2]), '16', vr(T + 1))
            o('v_and_b32', vr(r[3]), '0xffff0000', vr(T + 1))
            for i in range(4): o('v_min_f32', vr(T + i), '0', vr(r[i]))
            for i in range(4): o('v_mul_f32', vr(T + i), lit(LOG2E), vr(T + i))
            for i in range(4): o('v_exp_f32', vr(T + i), vr(T + i))
            for i in range(4): o('v_max_f32', vr(r[i]), '0', vr(r[i]))
            for i in range(4): o('v_add_f32', vr(T + i), lit(1e-6), vr(T + i))
            for i in range(4): o('v_add_f32', vr(r[i]), vr(r[i]), vr(T + i))
            o('v_cvt_pk_bf16_f32', vr(a0 + 2 * b), vr(r[0]), vr(r[1]))
            o('v_cvt_pk_bf16_f32', vr(a0 + 2 * b + 1), vr(r[2]), vr(r[3]))
        return ops

    def ep_kv(s, setn):
        ops = []
        o = lambda mn, *x, **k: ops.append(mkop(mn, *x, **k))
        k = acc(setn, 0); v = acc(setn, 1)
        PV = vTA; DD = vTA
        RSR = vTA
        T = vT4
        o('v_lshrrev_b32', vr(T), '9', vr(vL16))
        o('v_lshlrev_b32', vr(T), '4', vr(T))
        o('s_lshl_b32', sr(sT1), sr(sM), '7')
        o('v_add_u32', vr(T), sr(sT1), vr(T))
        o('v_add_u32', vr(T), hex(RSB), vr(T))
        for g in range(4): o('ds_read_b128', vr(RSR + 4 * g, 4), vr(T), mods='offset:%d' % (g * 32))
        for i in range(16): o('v_mul_f32', vr(v + i), vr(v + i), vr(RSR + i))
        ops += s.phi_ops(k, 16, lambda i: RSR + i)
        for i in range(8): o('v_cvt_pk_bf16_f32', vr(PV + i), vr(v + 2 * i), vr(v + 2 * i + 1))
        for i in range(8): o('v_cndmask_b32', vr(v + i), vr(vOnes), vr(PV + i), sr(sMask, 2))
        for i in range(8): o('v_cndmask_b32', vr(v + 8 + i), vr(PV + i), vr(vOnes), sr(sMask, 2))
        o('s_lshl_b32', sr(sT1), sr(sM), '13')
        o('s_lshl_b32', sr(sT2), sr(sC), '12'); o('s_add_u32', sr(sT1), sr(sT1), sr(sT2))
        o('s_add_u32', sr(sT1), sr(sT1), hex(KVL))
        o('v_add_u32', vr(T), sr(sT1), vr(vL16))
        o(MF, vr(DD, 16), vr(k, 4), vr(v, 4), '0')
        o(MF, vr(DD, 16), vr(k + 4, 4), vr(v + 4, 4), vr(DD, 16))
        ops += [None] * 10
        o('ds_write_b128', vr(T), vr(DD, 4), mods='offset:0')
        o('ds_write_b128', vr(T), vr(DD + 4, 4), mods='offset:1024')
        ops += [None]
        o(MF, vr(DD, 16), vr(k, 4), vr(v + 8, 4), '0')
        o(MF, vr(DD, 16), vr(k + 4, 4), vr(v + 12, 4), vr(DD, 16))
        ops += [None] * 10
        o('ds_write_b128', vr(T), vr(DD + 8, 4), mods='offset:2048')
        o('ds_write_b128', vr(T), vr(DD + 12, 4), mods='offset:3072')
        return ops

    def wbuf(s, r, kk, u):
        if s.pair(r):
            return vW + (kk % 4) * 4
        return vW + (kk % 2) * 8 + u * 4

    def wread(s, rnd, kk, only_u=None, xpart=True):
        a = s.a
        rn = s.rounds[rnd]
        per = 8 if s.pair(rnd) else 4
        st = s.wst[(rnd, kk // per)]
        so = s.slot[st] * SLOT
        win, so = so >> 16, so & 0xffff
        kq = kk % per
        units = 1 if s.pair(rnd) else 2
        if rnd == 0 and xpart:
            xs = s.xst[kk // 4]
            xo = s.slot[xs] * SLOT
            xw, xo = xo >> 16, xo & 0xffff
            a('ds_read_b128', vr(xfr(kk), 4), vr(vP + 4 * xw + kq), mods='offset:%d' % xo)
            s.stage_reads.setdefault(xs, []).append(a.lg_issued - 1)
            if kq == 3: s.stage_done.add(xs)
        for u in range(units):
            if only_u is not None and u != only_u: continue
            for q in range(2):
                if rn == 'P2':
                    off = so + kq * 1024 + q * 256
                else:
                    off = so + u * 8192 + kq * 2048 + q * 512
                a('ds_read_b64_tr_b16', vr(s.wbuf(rnd, kk, u) + 2 * q, 2), vr(vLq + win), mods='offset:%d' % off)
                s.stage_reads.setdefault(st, []).append(a.lg_issued - 1)
        if kq == per - 1 and (only_u is None or only_u == units - 1):
            s.stage_done.add(st)

    def lq_bases(s, pattern, tt):
        a = s.a
        t0, t1, t2, t3 = tt
        a('v_lshrrev_b32', vr(t0), '9', vr(vL16))
        a('v_lshlrev_b32', vr(t0), '3', vr(t0))
        a('v_bfe_u32', vr(t1), vr(vL16), '6', '2')
        a('v_add_u32', vr(t0), vr(t0), vr(t1))
        a('v_bfe_u32', vr(t1), vr(vL16), '8', '1')
        a('v_bfe_u32', vr(t2), vr(vL16), '5', '1')
        if pattern == 'Q':
            a('v_lshl_add_u32', vr(t2), vr(t1), '1', vr(t2))
            a('s_lshl_b32', sr(sT0), sr(sC), '2')
            a('v_add_u32', vr(t2), sr(sT0), vr(t2))
            a('v_bfe_u32', vr(t3), vr(vL16), '7', '1')
            a('v_lshlrev_b32', vr(t3), '2', vr(t3))
            a('v_xor_b32', vr(t2), vr(t2), vr(t3))
            a('v_lshlrev_b32', vr(t2), '4', vr(t2))
            a('v_lshl_add_u32', vr(vLq), vr(t0), '7', vr(t2))
        else:
            a('s_lshl_b32', sr(sT0), sr(sC), '1')
            a('v_add_u32', vr(t2), sr(sT0), vr(t2))
            a('v_lshlrev_b32', vr(t3), '1', vr(t1))
            a('v_xor_b32', vr(t2), vr(t2), vr(t3))
            a('v_lshlrev_b32', vr(t2), '4', vr(t2))
            a('v_lshl_add_u32', vr(vLq), vr(t0), '6', vr(t2))
            a('v_lshlrev_b32', vr(t3), '13', vr(t1))
            a('v_add_u32', vr(vLq), vr(vLq), vr(t3))
        a('v_bfe_u32', vr(t3), vr(vL16), '4', '1')
        a('v_lshl_add_u32', vr(vLq), vr(t3), '3', vr(vLq))
        a('v_add_u32', vr(vLq + 1), '0x10000', vr(vLq))

    def setup(s):
        a = s.a; typ = s.typ
        if not P('EARLYPRE', 1):
            return s.setup_late()
        srd(a, S_H, 22, WS_BYTES)
        a('s_lshl_b32', sr(sRowCnt), sr(sI), '8')
        a('s_add_u32', sr(sRowCnt), sr(sRowCnt), hex(ARENA))
        a('s_lshl_b32', sr(sColCnt), sr(sJ), '8')
        a('s_add_u32', sr(sColCnt), sr(sColCnt), hex(ARENA + 16 * 256))
        a('s_lshl_b32', sr(sDoneC), sr(sP), '8')
        a('s_add_u32', sr(sDoneC), sr(sDoneC), hex(ARENA + 32 * 256))
        a('s_lshl_b32', sr(sAcc), sr(sP), '13')
        a('s_add_u32', sr(sAcc), sr(sAcc), hex(ACC_OFF))
        Z = vT4
        for i in range(4): a('v_mov_b32', vr(Z + i), '0')
        a('v_mov_b32', vr(vTA + 5), hex(OOB))
        a('v_cmp_eq_u32', 'vcc', '0', 'v0')
        a('v_cndmask_b32', vr(vTA + 4), vr(vTA + 5), vr(Z))
        if getattr(a, 'stamps', False):
            a('v_mov_b32', 'v0', vr(vStE))
        a('v_mov_b32', vr(vXE + 1), '0'); a('v_mov_b32', vr(vWE + 1), '0')
        a('s_mov_b32', sr(sT4), hex(OOB))
        a('s_cmp_eq_u32', sr(sJ), '0')
        a('s_cselect_b32', sr(sT0), sr(sRowCnt), sr(sT4))
        a('buffer_store_dword', vr(Z), vr(vTA + 4), sr(S_H, 4), sr(sT0), mods='offen sc1')
        a('s_cmp_eq_u32', sr(sI), '0')
        a('s_cselect_b32', sr(sT0), sr(sColCnt), sr(sT4))
        a('s_cselect_b32', sr(sT1), sr(sDoneC), sr(sT4))
        a('s_cselect_b32', sr(sT2), sr(sAcc), sr(sT4))
        a('buffer_store_dword', vr(Z), vr(vTA + 4), sr(S_H, 4), sr(sT0), mods='offen sc1', tag='zrc')
        if typ == 'O':
            a('buffer_store_dword', vr(Z), vr(vTA + 4), sr(S_H, 4), sr(sT1), mods='offen sc1')
            a('s_min_u32', sr(sT3), sr(sT2), hex(OOB - 0x10000))
            a('s_add_u32', sr(sT3), sr(sT3), sr(sM0))
            a('buffer_store_dwordx4', vr(Z, 4), vr(vL16), sr(S_H, 4), sr(sT3), mods='offen sc1', tag='zkv')
        LL = s.late_loads()
        LL[0]()
        t = vTA
        a('s_min_u32', sr(sT6), sr(sW), '4')
        if typ == 'E':
            cands = [(S_G, sFo, 0), (S_U, sFo, 0), (S_Q, sQo, 0), (S_G, sFo2, 0), (S_U, sFo2, 0)]
        else:
            cands = [(S_Q, sQo, 1024), (S_Q, sQo, 2048), (S_G, sFo, 0), (S_U, sFo, 0), (S_G, sFo2, 0)]
        for k in range(3): a('s_mov_b32', sr(S_T0 + k), sr(cands[0][0] + k))
        a('s_add_u32', sr(sT7), sr(cands[0][1]), str(cands[0][2]))
        a('s_mov_b32', sr(sT8), '3584' if cands[0][0] != S_Q else '3072')
        for sg in range(1, 5):
            c = cands[sg]
            a('s_add_u32', sr(sT1), sr(c[1]), str(c[2]))
            a('s_cmp_eq_u32', sr(sT6), str(sg))
            for k in range(3): a('s_cselect_b32', sr(S_T0 + k), sr(c[0] + k), sr(S_T0 + k))
            a('s_cselect_b32', sr(sT7), sr(sT1), sr(sT7))
            a('s_cselect_b32', sr(sT8), '3072' if c[0] == S_Q else '3584', sr(sT8))
        a('s_mov_b32', sr(S_T0 + 3), '0x20000')
        for k in range(3): a('s_mov_b32', sr(S_T1 + k), sr(S_T0 + k))
        a('s_mov_b32', sr(S_T1 + 3), '0x20000')
        a('v_lshrrev_b32', vr(t), '7', vr(vL16))
        a('v_mul_lo_u32', vr(t), vr(t), sr(sT8))
        a('v_bfe_u32', vr(t + 1), vr(vL16), '4', '3')
        a('v_bfe_u32', vr(t + 2), vr(vL16), '8', '1')
        a('v_lshlrev_b32', vr(t + 2), '2', vr(t + 2))
        a('v_xor_b32', vr(t + 1), vr(t + 1), vr(t + 2))
        a('v_lshl_add_u32', vr(t), vr(t + 1), '4', vr(t))
        a('v_mov_b32', vr(t + 1), vr(t))
        a('s_lshl_b32', sr(sT0), sr(sI), '5')
        a('s_mul_i32', sr(sT0), sr(sT0), sr(sT8))
        a('s_add_u32', sr(sT7), sr(sT7), sr(sT0))
        a('s_lshl_b32', sr(sT1), sr(sT8), '3')
        a('s_lshl_b32', sr(sT2), sr(sT8), '4')
        a('s_add_u32', sr(sT3), sr(sT1), sr(sT2))
        if typ == 'O':
            a('s_cmp_eq_u32', sr(sC), '1')
            for k in range(3): a('s_cselect_b32', sr(S_T1 + k), sr(S_U + k), sr(S_T1 + k))
            a('s_cselect_b32', sr(sT1), '57344', sr(sT1))
            a('s_cselect_b32', sr(sT2), '0', sr(sT2))
            a('s_cselect_b32', sr(sT3), '57344', sr(sT3))
            a('v_lshrrev_b32', vr(t + 2), '6', vr(vL16))
            a('v_mul_u32_u24', vr(t + 2), '3584', vr(t + 2))
            a('v_and_b32', vr(t + 3), '48', vr(vL16))
            a('v_add_u32', vr(t + 2), vr(t + 2), vr(t + 3))
            a('v_xor_b32', vr(t + 3), '32', vr(t + 2))
            a('s_cselect_b64', 'vcc', '-1', '0')
            a('v_cndmask_b32', vr(t), vr(t), vr(t + 2))
            a('v_cndmask_b32', vr(t + 1), vr(t + 1), vr(t + 3))
        a('s_min_u32', sr(sT4), sr(sW), '5')
        a('s_lshl_b32', sr(sT4), sr(sT4), '12')
        a('s_add_u32', sr(sScr), sr(sT4), hex(SCR))
        a('s_cmp_ge_u32', sr(sW), '5')
        a('s_cselect_b32', sr(S_T0 + 2), '0', sr(S_T0 + 2))
        a('s_cselect_b32', sr(S_T1 + 2), '0', sr(S_T1 + 2))
        a('s_add_u32', sr(sO1), sr(sT7), sr(sT1))
        a('s_add_u32', sr(sO2), sr(sT7), sr(sT2))
        a('s_add_u32', sr(sO3), sr(sT7), sr(sT3))
        a('s_mov_b32', sr(sO0), sr(sT7))
        for f in LL[1:5]: f()
        global AHEAD
        save = AHEAD; AHEAD = 2
        s.issue_more(now=True)
        AHEAD = save
        a.stamp(41)
        srd(a, S_DBG, 20, 256)
        a('s_lshl_b32', sr(sT0), sr(sI), '2')
        a('s_add_u32', sr(sT0), sr(sT0), sr(sM))
        a('s_mul_i32', sr(sHb), sr(sT0), str(144 * 1024))
        a('s_mov_b32', sr(sMask), '0xffff'); a('s_mov_b32', sr(sMask + 1), '0xffff')
        a('s_lshl_b32', sr(sT0), sr(sC), '12')
        a('s_add_u32', sr(sAccC), sr(sAcc), sr(sT0))
        a('s_lshl_b32', sr(sArow), sr(sI), '2')
        a('s_lshl_b32', sr(sAcol), sr(sJ), '2')
        a('s_add_u32', sr(sAcol), sr(sAcol), '128')
        a('s_lshl_b32', sr(sT0), sr(sC), '7')
        a('s_add_u32', sr(sCT), sr(sT0), hex(CTB))
        a('s_lshl_b32', sr(sT0), sr(sFo), '5')
        a('s_add_u32', sr(sHq), sr(sHb), sr(sT0))
        a('s_lshl_b32', sr(sT1), sr(sC), '11')
        a('s_add_u32', sr(sHq), sr(sHq), sr(sT1))
        a('s_lshl_b32', sr(sT0), sr(sFo2), '5')
        a('s_add_u32', sr(sHq2), sr(sHb), sr(sT0))
        if typ == 'E':
            a('s_add_u32', sr(sHq2), sr(sHq2), sr(sT1))
            a('s_lshl_b32', sr(sT0), sr(sP), '12')
            a('s_add_u32', sr(sHo), sr(sHb), sr(sT0))
            a('s_add_u32', sr(sHo), sr(sHo), sr(sT1))
            a('s_add_u32', sr(sHo), sr(sHo), str(112 * 1024))
        else:
            a('s_lshl_b32', sr(sT1), sr(sC), '10')
            a('s_add_u32', sr(sHq2), sr(sHq2), sr(sT1))
            a('v_mov_b32', vr(vOnes), '0x3f803f80')
        T = vT4
        a('v_mov_b32', vr(T), hex(FLG))
        a('v_mov_b32', vr(T + 2), '0'); a('v_mov_b32', vr(T + 3), '0')
        a('ds_write_b64', vr(T), vr(T + 2, 2))
        a('ds_write_b32', vr(T), vr(T + 2), mods='offset:8')
        s.lq_bases('Q', [vT4, vT4 + 1, vT4 + 2, vT4 + 3])
        t = vT4
        a('v_bfe_u32', vr(t), vr(vL16), '4', '5')
        a('s_lshl_b32', sr(sT0), sr(sM), '5')
        a('v_add_u32', vr(t + 1), sr(sT0), vr(t))
        a('v_lshlrev_b32', vr(t + 1), '7', vr(t + 1))
        a('v_bfe_u32', vr(t + 2), vr(vL16), '5', '3')
        a('v_lshrrev_b32', vr(t + 3), '9', vr(vL16))
        a('v_xor_b32', vr(t + 2), vr(t + 2), vr(t + 3))
        for kq in range(4):
            a('v_xor_b32', vr(t + 3), str(2 * kq), vr(t + 2))
            a('v_lshl_add_u32', vr(vP + kq), vr(t + 3), '4', vr(t + 1))
            a('v_add_u32', vr(vP + 4 + kq), '0x10000', vr(vP + kq))
        LL[5]()
        a.stamp(42)
        s.issue_more(now=True)
        a.stamp(43)
        a.wait_tag('zrc')
        T = vT4
        s.tid0(T, T + 1)
        a('s_mov_b32', sr(sT1), hex(OOB))
        a('s_cmp_eq_u32', sr(sJ), '0')
        a('s_cselect_b32', sr(sT0), sr(sArow), sr(sT1))
        a('buffer_store_dword', vr(T + 1), vr(T), sr(S_DBG, 4), sr(sT0), mods='offen sc1')
        a('s_cmp_eq_u32', sr(sI), '0')
        a('s_cselect_b32', sr(sT0), sr(sAcol), sr(sT1))
        a('buffer_store_dword', vr(T + 1), vr(T), sr(S_DBG, 4), sr(sT0), mods='offen sc1')
        a.stamp(44)
        for op in s.row_stats_ops() + s.cs_slice_ops():
            if callable(op): op()
            elif op is not None: a.emit(op)
        a.stamp(45)

    def setup_late(s):
        a = s.a; typ = s.typ
        global AHEAD
        save = AHEAD; AHEAD = 2
        s.issue_more(now=True)
        AHEAD = save
        if P('SPF', 1): s.sparse_pf(0)
        srd(a, S_H, 22, WS_BYTES)
        a('s_lshl_b32', sr(sRowCnt), sr(sI), '8')
        a('s_add_u32', sr(sRowCnt), sr(sRowCnt), hex(ARENA))
        a('s_lshl_b32', sr(sColCnt), sr(sJ), '8')
        a('s_add_u32', sr(sColCnt), sr(sColCnt), hex(ARENA + 16 * 256))
        a('s_lshl_b32', sr(sDoneC), sr(sP), '8')
        a('s_add_u32', sr(sDoneC), sr(sDoneC), hex(ARENA + 32 * 256))
        a('s_lshl_b32', sr(sAcc), sr(sP), '13')
        a('s_add_u32', sr(sAcc), sr(sAcc), hex(ACC_OFF))
        Z = vT4
        for i in range(4): a('v_mov_b32', vr(Z + i), '0')
        a('v_mov_b32', vr(vTA + 5), hex(OOB))
        a('v_cmp_eq_u32', 'vcc', '0', 'v0')
        a('v_cndmask_b32', vr(vTA + 4), vr(vTA + 5), vr(Z))
        if getattr(a, 'stamps', False):
            a('v_mov_b32', 'v0', vr(vStE))
        a('v_mov_b32', vr(vXE + 1), '0'); a('v_mov_b32', vr(vWE + 1), '0')
        a('s_mov_b32', sr(sT4), hex(OOB))
        a('s_cmp_eq_u32', sr(sJ), '0')
        a('s_cselect_b32', sr(sT0), sr(sRowCnt), sr(sT4))
        a('buffer_store_dword', vr(Z), vr(vTA + 4), sr(S_H, 4), sr(sT0), mods='offen sc1')
        a('s_cmp_eq_u32', sr(sI), '0')
        a('s_cselect_b32', sr(sT0), sr(sColCnt), sr(sT4))
        a('s_cselect_b32', sr(sT1), sr(sDoneC), sr(sT4))
        a('s_cselect_b32', sr(sT2), sr(sAcc), sr(sT4))
        a('buffer_store_dword', vr(Z), vr(vTA + 4), sr(S_H, 4), sr(sT0), mods='offen sc1', tag='zrc')
        if typ == 'O':
            a('buffer_store_dword', vr(Z), vr(vTA + 4), sr(S_H, 4), sr(sT1), mods='offen sc1')
            a('s_min_u32', sr(sT3), sr(sT2), hex(OOB - 0x10000))
            a('s_add_u32', sr(sT3), sr(sT3), sr(sM0))
            a('buffer_store_dwordx4', vr(Z, 4), vr(vL16), sr(S_H, 4), sr(sT3), mods='offen sc1', tag='zkv')
        a.stamp(41)
        srd(a, S_DBG, 20, 256)
        a('s_lshl_b32', sr(sT0), sr(sI), '2')
        a('s_add_u32', sr(sT0), sr(sT0), sr(sM))
        a('s_mul_i32', sr(sHb), sr(sT0), str(144 * 1024))
        a('s_mov_b32', sr(sMask), '0xffff'); a('s_mov_b32', sr(sMask + 1), '0xffff')
        a('s_lshl_b32', sr(sT0), sr(sC), '12')
        a('s_add_u32', sr(sAccC), sr(sAcc), sr(sT0))
        a('s_lshl_b32', sr(sArow), sr(sI), '2')
        a('s_lshl_b32', sr(sAcol), sr(sJ), '2')
        a('s_add_u32', sr(sAcol), sr(sAcol), '128')
        a('s_lshl_b32', sr(sT0), sr(sC), '7')
        a('s_add_u32', sr(sCT), sr(sT0), hex(CTB))
        a('s_lshl_b32', sr(sT0), sr(sFo), '5')
        a('s_add_u32', sr(sHq), sr(sHb), sr(sT0))
        a('s_lshl_b32', sr(sT1), sr(sC), '11')
        a('s_add_u32', sr(sHq), sr(sHq), sr(sT1))
        a('s_lshl_b32', sr(sT0), sr(sFo2), '5')
        a('s_add_u32', sr(sHq2), sr(sHb), sr(sT0))
        if typ == 'E':
            a('s_add_u32', sr(sHq2), sr(sHq2), sr(sT1))
            a('s_lshl_b32', sr(sT0), sr(sP), '12')
            a('s_add_u32', sr(sHo), sr(sHb), sr(sT0))
            a('s_add_u32', sr(sHo), sr(sHo), sr(sT1))
            a('s_add_u32', sr(sHo), sr(sHo), str(112 * 1024))
        else:
            a('s_lshl_b32', sr(sT1), sr(sC), '10')
            a('s_add_u32', sr(sHq2), sr(sHq2), sr(sT1))
            a('v_mov_b32', vr(vOnes), '0x3f803f80')
        T = vT4
        a('v_mov_b32', vr(T), hex(FLG))
        a('v_mov_b32', vr(T + 2), '0'); a('v_mov_b32', vr(T + 3), '0')
        a('ds_write_b64', vr(T), vr(T + 2, 2))
        a('ds_write_b32', vr(T), vr(T + 2), mods='offset:8')
        s.lq_bases('Q', [vT4, vT4 + 1, vT4 + 2, vT4 + 3])
        t = vT4
        a('v_bfe_u32', vr(t), vr(vL16), '4', '5')
        a('s_lshl_b32', sr(sT0), sr(sM), '5')
        a('v_add_u32', vr(t + 1), sr(sT0), vr(t))
        a('v_lshlrev_b32', vr(t + 1), '7', vr(t + 1))
        a('v_bfe_u32', vr(t + 2), vr(vL16), '5', '3')
        a('v_lshrrev_b32', vr(t + 3), '9', vr(vL16))
        a('v_xor_b32', vr(t + 2), vr(t + 2), vr(t + 3))
        for kq in range(4):
            a('v_xor_b32', vr(t + 3), str(2 * kq), vr(t + 2))
            a('v_lshl_add_u32', vr(vP + kq), vr(t + 3), '4', vr(t + 1))
            a('v_add_u32', vr(vP + 4 + kq), '0x10000', vr(vP + kq))
        t = vTA
        a('s_min_u32', sr(sT6), sr(sW), '4')
        if typ == 'E':
            cands = [(S_G, sFo, 0), (S_U, sFo, 0), (S_Q, sQo, 0), (S_G, sFo2, 0), (S_U, sFo2, 0)]
        else:
            cands = [(S_Q, sQo, 1024), (S_Q, sQo, 2048), (S_G, sFo, 0), (S_U, sFo, 0), (S_G, sFo2, 0)]
        for k in range(3): a('s_mov_b32', sr(S_T0 + k), sr(cands[0][0] + k))
        a('s_add_u32', sr(sT7), sr(cands[0][1]), str(cands[0][2]))
        a('s_mov_b32', sr(sT8), '3584' if cands[0][0] != S_Q else '3072')
        for sg in range(1, 5):
            c = cands[sg]
            a('s_add_u32', sr(sT1), sr(c[1]), str(c[2]))
            a('s_cmp_eq_u32', sr(sT6), str(sg))
            for k in range(3): a('s_cselect_b32', sr(S_T0 + k), sr(c[0] + k), sr(S_T0 + k))
            a('s_cselect_b32', sr(sT7), sr(sT1), sr(sT7))
            a('s_cselect_b32', sr(sT8), '3072' if c[0] == S_Q else '3584', sr(sT8))
        a('s_mov_b32', sr(S_T0 + 3), '0x20000')
        for k in range(3): a('s_mov_b32', sr(S_T1 + k), sr(S_T0 + k))
        a('s_mov_b32', sr(S_T1 + 3), '0x20000')
        a('v_lshrrev_b32', vr(t), '7', vr(vL16))
        a('v_mul_lo_u32', vr(t), vr(t), sr(sT8))
        a('v_bfe_u32', vr(t + 1), vr(vL16), '4', '3')
        a('v_bfe_u32', vr(t + 2), vr(vL16), '8', '1')
        a('v_lshlrev_b32', vr(t + 2), '2', vr(t + 2))
        a('v_xor_b32', vr(t + 1), vr(t + 1), vr(t + 2))
        a('v_lshl_add_u32', vr(t), vr(t + 1), '4', vr(t))
        a('v_mov_b32', vr(t + 1), vr(t))
        a('s_lshl_b32', sr(sT0), sr(sI), '5')
        a('s_mul_i32', sr(sT0), sr(sT0), sr(sT8))
        a('s_add_u32', sr(sT7), sr(sT7), sr(sT0))
        a('s_lshl_b32', sr(sT1), sr(sT8), '3')
        a('s_lshl_b32', sr(sT2), sr(sT8), '4')
        a('s_add_u32', sr(sT3), sr(sT1), sr(sT2))
        if typ == 'O':
            a('s_cmp_eq_u32', sr(sC), '1')
            for k in range(3): a('s_cselect_b32', sr(S_T1 + k), sr(S_U + k), sr(S_T1 + k))
            a('s_cselect_b32', sr(sT1), '57344', sr(sT1))
            a('s_cselect_b32', sr(sT2), '0', sr(sT2))
            a('s_cselect_b32', sr(sT3), '57344', sr(sT3))
            a('v_lshrrev_b32', vr(t + 2), '6', vr(vL16))
            a('v_mul_u32_u24', vr(t + 2), '3584', vr(t + 2))
            a('v_and_b32', vr(t + 3), '48', vr(vL16))
            a('v_add_u32', vr(t + 2), vr(t + 2), vr(t + 3))
            a('v_xor_b32', vr(t + 3), '32', vr(t + 2))
            a('s_cselect_b64', 'vcc', '-1', '0')
            a('v_cndmask_b32', vr(t), vr(t), vr(t + 2))
            a('v_cndmask_b32', vr(t + 1), vr(t + 1), vr(t + 3))
        a('s_min_u32', sr(sT4), sr(sW), '5')
        a('s_lshl_b32', sr(sT4), sr(sT4), '12')
        a('s_add_u32', sr(sScr), sr(sT4), hex(SCR))
        a('s_cmp_ge_u32', sr(sW), '5')
        a('s_cselect_b32', sr(S_T0 + 2), '0', sr(S_T0 + 2))
        a('s_cselect_b32', sr(S_T1 + 2), '0', sr(S_T1 + 2))
        a('s_add_u32', sr(sO1), sr(sT7), sr(sT1))
        a('s_add_u32', sr(sO2), sr(sT7), sr(sT2))
        a('s_add_u32', sr(sO3), sr(sT7), sr(sT3))
        a('s_mov_b32', sr(sO0), sr(sT7))
        a.stamp(42)
        s.issue_more(now=True)
        a.stamp(43)
        a.wait_tag('zrc')
        T = vT4
        s.tid0(T, T + 1)
        a('s_mov_b32', sr(sT1), hex(OOB))
        a('s_cmp_eq_u32', sr(sJ), '0')
        a('s_cselect_b32', sr(sT0), sr(sArow), sr(sT1))
        a('buffer_store_dword', vr(T + 1), vr(T), sr(S_DBG, 4), sr(sT0), mods='offen sc1')
        a('s_cmp_eq_u32', sr(sI), '0')
        a('s_cselect_b32', sr(sT0), sr(sAcol), sr(sT1))
        a('buffer_store_dword', vr(T + 1), vr(T), sr(S_DBG, 4), sr(sT0), mods='offen sc1')
        a.stamp(44)

    def sparse_pf(s, phase):
        a = s.a; typ = s.typ
        if typ == 'E':
            mats = {'GU0': [(S_G, sFo, 0, 3584), (S_U, sFo, 0, 3584)], 'GU1': [(S_G, sFo2, 0, 3584), (S_U, sFo2, 0, 3584)], 'QP': [(S_Q, sQo, 0, 3072), None]}
        else:
            mats = {'KV': [(S_Q, sQo, 1024, 3072), (S_Q, sQo, 2048, 3072)], 'P2': [(S_G, sFo2, 0, 3584), (S_U, sFo2, 0, 3584)], 'GU0': [(S_G, sFo, 0, 3584), (S_U, sFo, 0, 3584)]}
        R = [mats[r] for r in s.rounds]
        if phase == 0: tab = ['X', R[0][0], R[0][1], R[1][0]]
        else: tab = [R[1][1], R[2][0], R[2][1], None]
        T = S_T0
        t0, t1 = vG, vG + 1
        first = [e for e in tab if e not in ('X', None)][0]
        a('s_lshr_b32', sr(sT2), sr(sW), '1')
        for k in range(3): a('s_mov_b32', sr(T + k), sr(first[0] + k))
        a('s_add_u32', sr(sT3), sr(first[1]), str(first[2]))
        a('s_mov_b32', sr(sT1), str(first[3]))
        for sel, e in enumerate(tab):
            if e in ('X',) or e is first: continue
            if e is None:
                a('s_cmp_eq_u32', sr(sT2), str(sel))
                a('s_cselect_b32', sr(T + 2), '0', sr(T + 2))
                continue
            a('s_add_u32', sr(sT0), sr(e[1]), str(e[2]))
            a('s_cmp_eq_u32', sr(sT2), str(sel))
            for k in range(3): a('s_cselect_b32', sr(T + k), sr(e[0] + k), sr(T + k))
            a('s_cselect_b32', sr(sT3), sr(sT0), sr(sT3))
            a('s_cselect_b32', sr(sT1), str(e[3]), sr(sT1))
        a('s_mov_b32', sr(T + 3), '0x20000')
        a('s_and_b32', sr(sT0), sr(sI), '3')
        a('s_lshl_b32', sr(sT0), sr(sT0), '1')
        a('s_and_b32', sr(sT4), sr(sW), '1')
        a('s_add_u32', sr(sT0), sr(sT0), sr(sT4))
        a('s_lshl_b32', sr(sT0), sr(sT0), '6')
        a('v_lshrrev_b32', vr(t0), '4', vr(vL16))
        a('v_add_u32', vr(t0), sr(sT0), vr(t0))
        a('v_mul_lo_u32', vr(t0), vr(t0), sr(sT1))
        a('v_add_u32', vr(t0), sr(sT3), vr(t0))
        if 'X' in tab:
            a('s_and_b32', sr(sT0), sr(sJ), '7')
            a('s_lshl_b32', sr(sT0), sr(sT0), '1')
            a('s_add_u32', sr(sT0), sr(sT0), sr(sT4))
            a('s_lshl_b32', sr(sT0), sr(sT0), '3')
            a('v_lshrrev_b32', vr(t1), '7', vr(vL16))
            a('v_add_u32', vr(t1), sr(sT0), vr(t1))
            a('v_lshlrev_b32', vr(t1), '10', vr(t1))
            a('v_add_u32', vr(t1), sr(sXoff), vr(t1))
            a('v_bfe_u32', vr(vG + 2), vr(vL16), '4', '3')
            a('v_lshl_add_u32', vr(t1), vr(vG + 2), '7', vr(t1))
            a('s_cmp_eq_u32', sr(sT2), '0')
            for k in range(3): a('s_cselect_b32', sr(T + k), sr(S_X + k), sr(T + k))
            a('s_cselect_b64', 'vcc', '-1', '0')
            a('v_cndmask_b32', vr(t0), vr(t0), vr(t1))
        a('buffer_load_dword', vr(vX + 120 + phase), vr(t0), sr(T, 4), '0', mods='offen')

    def late_loads(s):
        a = s.a
        L = []
        def row():
            a('s_lshl_b32', sr(sT0), sr(sI), '7')
            a('s_lshl_b32', sr(sT1), sr(sJ), '3')
            a('s_add_u32', sr(sT0), sr(sT0), sr(sT1))
            a('s_add_u32', sr(sT5), sr(sT0), sr(sW))
            a('s_lshl_b32', sr(sT0), sr(sT5), '10')
            a('buffer_load_dwordx4', vr(acc(1, 0), 4), vr(vL16), sr(S_X, 4), sr(sT0), mods='offen')
        L.append(row)
        t = vTA
        for e in range(4):
            def f(e=e):
                a('s_add_u32', 'm0', sr(sScr), str(e * 1024))
                a('s_nop', '0')
                a('buffer_load_dwordx4', vr(t + (0 if e < 2 else 1)), sr((S_T0 if e < 2 else S_T1), 4), sr([sO0, sO1, sO2, sO3][e]), mods='offen lds', tag='slice' if e == 3 else None)
            L.append(f)
        def code(i):
            def f():
                a('s_and_b32', sr(sT0), sr(sSlot), '3')
                a('s_lshl_b32', sr(sT0), sr(sT0), '13')
                a('s_add_u32', sr(sT0), sr(sT0), sr(sM0))
                a('s_add_u32', sr(sT0), sr(sT0), '8192')
                a('v_add_u32', vr(vTA + 6), sr(sT0), vr(vL16))
                a('global_load_dwordx4', vr(vX + 116, 4), vr(vTA + 6), sr(sPC, 2))
            return f
        L.append(code(0))
        return L

    def announce_kv(s):
        a = s.a
        T = vT4
        s.tid0(T, T + 1)
        a('s_lshl_b32', sr(sT0), sr(sP), '2')
        a('s_add_u32', sr(sT0), sr(sT0), '192')
        a('s_cmp_eq_u32', sr(sI), '0')
        a('s_cselect_b32', sr(sT0), sr(sT0), hex(OOB))
        a('buffer_store_dword', vr(T + 1), vr(T), sr(S_DBG, 4), sr(sT0), mods='offen sc1')

    def row_stats_ops(s):
        ops = []
        a = lambda mn, *x, **k: ops.append(mkop(mn, *x, **k))
        X = acc(1, 0); A = acc(1, 0) + 4
        ones = acc(1, 0) + 8
        a('v_mov_b32', vr(ones), '0x3f803f80')
        a('v_dot2_f32_bf16', vr(A), vr(X), vr(ones), '0')
        a('v_dot2_f32_bf16', vr(A + 1), vr(X), vr(X), '0')
        for i in range(1, 4):
            a('v_dot2c_f32_bf16', vr(A), vr(X + i), vr(ones))
            a('v_dot2c_f32_bf16', vr(A + 1), vr(X + i), vr(X + i))
        for dpp in ('row_shr:1', 'row_shr:2', 'row_shr:4', 'row_shr:8'):
            for r in (A, A + 1):
                a('v_add_f32_dpp', vr(r), vr(r), vr(r), mods='%s row_mask:0xf bank_mask:0xf bound_ctrl:0' % dpp)
        for dpp, rm in (('row_bcast:15', '0xa'), ('row_bcast:31', '0xc')):
            for r in (A, A + 1):
                a('v_add_f32_dpp', vr(r), vr(r), vr(r), mods='%s row_mask:%s bank_mask:0xf' % (dpp, rm))
        def rbf(r):
            a('v_cvt_pk_bf16_f32', vr(r), vr(r), vr(r)); a('v_lshlrev_b32', vr(r), '16', vr(r))
        a('v_mul_f32', vr(A), lit(1.0 / 512), vr(A))
        a('v_mul_f32', vr(A + 1), lit(1.0 / 512), vr(A + 1))
        a('v_fma_f32', vr(A + 1), '-' + vr(A), vr(A), vr(A + 1))
        a('v_max_f32', vr(A + 1), '0', vr(A + 1))
        rbf(A); rbf(A + 1)
        a('v_add_f32', vr(A + 1), lit(1e-5), vr(A + 1))
        rbf(A + 1)
        a('v_sqrt_f32', vr(A + 1), vr(A + 1))
        rbf(A + 1)
        a('v_mov_b32', vr(A + 2), hex(OOB))
        a('v_mov_b32', vr(A + 3), '0')
        a('v_cmp_eq_u32', 'vcc', '1008', vr(vL16))
        a('v_cndmask_b32', vr(A + 2), vr(A + 2), vr(A + 3))
        a('s_lshl_b32', sr(sF0), sr(sT5), '3')
        a('s_add_u32', sr(sF0), sr(sF0), hex(STAT_OFF))
        a('buffer_store_dwordx2', vr(A, 2), vr(A + 2), sr(S_H, 4), sr(sF0), mods='offen sc1')
        return ops

    def cs_slice_ops(s):
        ops = []
        typ = s.typ
        a = lambda mn, *x, **k: ops.append(mkop(mn, *x, **k))
        t = acc(1, 0) + 8; P = acc(1, 0)
        a('v_bfe_u32', vr(t), vr(vL16), '4', '4')
        a('v_bfe_u32', vr(t + 1), vr(vL16), '8', '1')
        a('v_cmp_eq_u32', 'vcc', vr(t), vr(t + 1))
        a('v_mov_b32', vr(t + 2), '0x3f803f80')
        a('v_mov_b32', vr(t + 3), '0')
        for i in range(4): a('v_cndmask_b32', vr(vSel + i), vr(t + 3), vr(t + 2))
        a('v_lshrrev_b32', vr(P), '9', vr(vL16))
        a('v_lshlrev_b32', vr(P), '3', vr(P))
        a('v_bfe_u32', vr(P + 1), vr(vL16), '6', '2')
        a('v_add_u32', vr(P), vr(P), vr(P + 1))
        a('v_bfe_u32', vr(P + 1), vr(vL16), '8', '1')
        a('v_bfe_u32', vr(P + 2), vr(vL16), '5', '1')
        a('v_bfe_u32', vr(P + 3), vr(vL16), '4', '1')
        a('v_lshl_add_u32', vr(P + 4), vr(P + 1), '1', vr(P + 2))
        a('v_bfe_u32', vr(P + 5), vr(vL16), '7', '1')
        a('v_lshlrev_b32', vr(P + 5), '2', vr(P + 5))
        a('v_xor_b32', vr(P + 4), vr(P + 4), vr(P + 5))
        a('v_lshlrev_b32', vr(P + 4), '4', vr(P + 4))
        a('v_lshl_add_u32', vr(P + 4), vr(P), '7', vr(P + 4))
        a('v_lshl_add_u32', vr(P + 4), vr(P + 3), '3', vr(P + 4))
        a('v_xor_b32', vr(P + 5), '64', vr(P + 4))
        a('s_mov_b32', sr(sF1), '512')
        if typ == 'O':
            a('v_lshlrev_b32', vr(P + 6), '1', vr(P + 1))
            a('v_xor_b32', vr(P + 6), vr(P + 6), vr(P + 2))
            a('v_lshlrev_b32', vr(P + 6), '4', vr(P + 6))
            a('v_lshl_add_u32', vr(P + 6), vr(P), '6', vr(P + 6))
            a('v_lshl_add_u32', vr(P + 6), vr(P + 3), '3', vr(P + 6))
            a('v_lshl_add_u32', vr(P + 6), vr(P + 1), '11', vr(P + 6))
            a('v_xor_b32', vr(P + 7), '32', vr(P + 6))
            def sel():
                aa = s.a
                aa('s_cmp_eq_u32', sr(sC), '1')
                aa('s_cselect_b64', 'vcc', '-1', '0')
                aa('s_cselect_b32', sr(sF1), '256', sr(sF1))
                aa('v_cndmask_b32', vr(P + 4), vr(P + 4), vr(P + 6))
                aa('v_cndmask_b32', vr(P + 5), vr(P + 5), vr(P + 7))
            ops.append(sel)
        a('v_add_u32', vr(P + 4), sr(sScr), vr(P + 4))
        a('v_add_u32', vr(P + 5), sr(sScr), vr(P + 5))
        a('s_lshl_b32', sr(sF2), sr(sF1), '2')
        a('s_add_u32', sr(sF3), sr(sF2), sr(sF1))
        F = acc(1, 1)
        ops.append(lambda: s.a.wait_tag('slice'))
        offs = [None, sF1, sF2, sF3]
        for cp in range(2):
            for k in range(4):
                ks, q = k // 2, k % 2
                if offs[k] is None:
                    ad = P + 4 + cp
                else:
                    ad = P + (k % 2)
                    a('v_add_u32', vr(ad), sr(offs[k]), vr(P + 4 + cp))
                a('ds_read_b64_tr_b16', vr(F + (cp * 2 + ks) * 4 + 2 * q, 2), vr(ad))
        ops += [None] * 6
        Da = vCs; Db = vCs + 4
        a(MF16, vr(Da, 4), vr(vSel, 4), vr(F, 4), '0')
        a(MF16, vr(Db, 4), vr(vSel, 4), vr(F + 8, 4), '0')
        a(MF16, vr(Da, 4), vr(vSel, 4), vr(F + 4, 4), vr(Da, 4))
        a(MF16, vr(Db, 4), vr(vSel, 4), vr(F + 12, 4), vr(Db, 4))
        ops += [None] * 8
        a('v_permlane16_swap_b32', vr(Da), vr(Da + 1))
        a('v_permlane16_swap_b32', vr(Db), vr(Db + 1))
        ops += [None] * 2
        a('v_permlane32_swap_b32', vr(Da), vr(Db))
        def st():
            aa = s.a
            aa('s_lshl_b32', sr(sF0), sr(sJ), '4')
            aa('s_add_u32', sr(sF0), sr(sF0), sr(sI))
            aa('s_mul_i32', sr(sF0), sr(sF0), '1280')
            aa('s_lshl_b32', sr(sF1), sr(sW), '8')
            aa('s_add_u32', sr(sF0), sr(sF0), sr(sF1))
            aa('s_add_u32', sr(sF0), sr(sF0), hex(CSP_OFF))
            aa('s_cmp_le_u32', sr(sW), '4')
            aa('s_cselect_b32', sr(sF0), sr(sF0), hex(OOB - 0x10000))
            aa('v_lshrrev_b32', vr(P), '2', vr(vL16))
            aa('buffer_store_dword', vr(Da), vr(P), sr(S_H, 4), sr(sF0), mods='offen sc1', tag='pub')
        ops.append(st)
        return ops

    def gather_loads(s):
        a = s.a
        T = vTA
        a('v_and_b32', vr(T + 4), '0x1f0', vr(vL16))
        a('v_lshrrev_b32', vr(T + 4), '1', vr(T + 4))
        a('s_lshl_b32', sr(sT1), sr(sI), '10')
        a('s_lshl_b32', sr(sT2), sr(sM), '8')
        a('s_add_u32', sr(sT1), sr(sT1), sr(sT2))
        a('s_add_u32', sr(sT1), sr(sT1), hex(STAT_OFF))
        a('buffer_load_dwordx2', vr(T, 2), vr(T + 4), sr(S_H, 4), sr(sT1), mods='offen sc1')
        a('s_mul_i32', sr(sT1), sr(sJ), str(16 * 1280))
        a('s_lshl_b32', sr(sT2), sr(sW), '8')
        a('s_add_u32', sr(sT1), sr(sT1), sr(sT2))
        a('s_add_u32', sr(sT1), sr(sT1), hex(CSP_OFF))
        a('s_cmp_le_u32', sr(sW), '4')
        a('s_cselect_b32', sr(sT1), sr(sT1), hex(OOB - 0x10000))
        a('v_lshrrev_b32', vr(T + 5), '2', vr(vL16))
        for i in range(16):
            a('buffer_load_dword', vr(s.greg(i)), vr(T + 5), sr(S_H, 4), sr(sT1), mods='offen offset:%d sc1' % ((i % 3) * 1280))
            if i % 3 == 2: a('s_add_u32', sr(sT1), sr(sT1), str(3 * 1280))

    def greg(s, i):
        return vG + i if i < 12 else vT4 + (i - 12)

    def gather_finish(s):
        ops = []
        o = lambda mn, *x, **k: ops.append(mkop(mn, *x, **k))
        g = s.greg
        for st in (1, 2, 4, 8):
            for i in range(0, 16, 2 * st):
                o('v_add_f32', vr(g(i)), vr(g(i)), vr(g(i + st)))
        T = vTA
        o('s_lshl_b32', sr(sT1), sr(sW), '8')
        o('s_add_u32', sr(sT1), sr(sT1), hex(CTB))
        o('s_cmp_le_u32', sr(sW), '4')
        o('s_cselect_b32', sr(sT1), sr(sT1), hex(DUMMY))
        o('v_add_u32', vr(T + 5), sr(sT1), vr(T + 5))
        o('ds_write_b32', vr(T + 5), vr(g(0)))
        A = vTA
        o('v_sub_f32', vr(A + 2), '0', vr(A))
        o('v_cvt_pk_bf16_f32', vr(A + 2), vr(A + 2), vr(A + 2))
        o('v_cmp_gt_u32', 'vcc', '512', vr(vL16))
        o('v_mov_b32', vr(A + 3), '0')
        o('v_cndmask_b32', vr(vXE), vr(A + 3), vr(A + 2))
        o('v_rcp_f32', vr(A + 5), vr(A + 1))
        o('v_mul_f32', vr(vCC), vr(A + 1), vr(A + 1))
        o('v_mul_f32', vr(vK0), lit(K0), vr(A + 5))
        o('v_mul_f32', vr(A + 6), vr(A + 5), vr(A + 5))
        o('v_mul_f32', vr(A + 6), vr(A + 6), vr(A + 5))
        o('v_mul_f32', vr(vK1), lit(K1C), vr(A + 6))
        if s.typ == 'E':
            o('v_mov_b32', vr(vRS), vr(A + 5))
        else:
            o('v_lshrrev_b32', vr(A + 4), '1', vr(A + 4))
            o('s_lshl_b32', sr(sT1), sr(sM), '7')
            o('s_add_u32', sr(sT1), sr(sT1), hex(RSB))
            o('v_add_u32', vr(A + 4), sr(sT1), vr(A + 4))
            o('ds_write_b32', vr(A + 4), vr(A + 5))
        return ops

    SEGS = {'E': [(0, 1), (3, 4), (2,)], 'O': ([(0, 1), (4,), (2, 3)] if P('ORDO', 1) else [(0, 1), (2, 3), (4,)])}

    def ext_ops(s, r):
        ops = []
        o = lambda mn, *x, **k: ops.append(mkop(mn, *x, **k))
        segs = s.SEGS[s.typ][r]
        T = vT4
        o('v_and_b32', vr(T), '0x1f0', vr(vL16))
        o('v_lshrrev_b32', vr(T), '2', vr(T))
        o('v_add_u32', vr(T), sr(sCT), vr(T))
        for u, sg in enumerate(segs):
            o('ds_read_b32', vr(T + 1 + u), vr(T), mods='offset:%d' % (sg * 256))
        ops += [None] * 3
        for u, sg in enumerate(segs):
            Q = T + 1 + u
            o('v_cvt_pk_bf16_f32', vr(T + 3), vr(Q), vr(Q))
            o('v_lshlrev_b32', vr(T + 3), '16', vr(T + 3))
            o('v_sub_f32', vr(T + 3), vr(Q), vr(T + 3))
            o('v_cvt_pk_bf16_f32', vr(vWE), vr(Q), vr(T + 3))
            ops += [None]
            Dd = acc(r % 2, u)
            if s.rounds[r] == 'KV':
                o(MF8, vr(Dd, 16), vr(vXE, 2), vr(vWE, 2), vr(Dd, 16))
            else:
                o(MF8, vr(Dd, 16), vr(vWE, 2), vr(vXE, 2), vr(Dd, 16))
        ops += [None] * 3
        return ops

    def l2_prefetch(s):
        a = s.a
        srd(a, S_WD, 16, 1792 * 1024); srd(a, S_WO, 8, 512 * 1024)
        t = vTA
        a('s_mul_i32', sr(sT2), sr(sSlot), '72')
        a('s_mul_i32', sr(sT3), sr(sW), '9')
        a('s_add_u32', sr(sT2), sr(sT2), sr(sT3))
        a('v_lshrrev_b32', vr(t), '6', vr(vL16))
        a('v_add_u32', vr(t), sr(sT2), vr(t))
        a('v_lshlrev_b32', vr(t), '10', vr(t))
        a('v_and_b32', vr(t + 1), '48', vr(vL16))
        a('v_lshlrev_b32', vr(t + 1), '3', vr(t + 1))
        a('v_add_u32', vr(t), vr(t), vr(t + 1))
        a('s_lshl_b32', sr(sT2), sr(sB), '9')
        a('v_add_u32', vr(t), sr(sT2), vr(t))
        a('v_mov_b32', vr(t + 1), hex(OOB))
        a('v_cmp_gt_u32', 'vcc', '576', vr(vL16))
        a('v_cndmask_b32', vr(t), vr(t + 1), vr(t))
        if 'nopfw' not in EXP:
            a('buffer_load_dword', vr(t + 2), vr(t), sr(S_WD, 4), '0', mods='offen')
            a('v_subrev_u32', vr(t + 1), str(1792 * 1024), vr(t))
            a('buffer_load_dword', vr(t + 3), vr(t + 1), sr(S_WO, 4), '0', mods='offen')
        a.raw('  s_getpc_b64 s[%d:%d]' % (sPC, sPC + 1)); a.pos += 1
        lab = 'L_k1_pc2%s' % s.typ
        a.label(lab)
        a.raw('  s_add_u32 s%d, s%d, k2_kernel-%s' % (sPC, sPC, lab)); a.pos += 1
        a.raw('  s_addc_u32 s%d, s%d, 0' % (sPC + 1, sPC + 1)); a.pos += 1
        a('v_add_u32', vr(t + 4), sr(sM0), vr(vL16))
        a('global_load_dword', vr(t + 5), vr(t + 4), sr(sPC, 2))
        a('v_add_u32', vr(t + 4), '0x2000', vr(t + 4))
        a('global_load_dword', vr(t + 6), vr(t + 4), sr(sPC, 2))

    def o_loads(s):
        a = s.a
        L = acc(0, 1); T = vTA
        a('v_lshrrev_b32', vr(T), '2', vr(vL16))
        a('v_xor_b32', vr(T + 1), '64', vr(T))
        for j in range(8):
            a('buffer_load_dword', vr(L + j), vr(T), sr(S_H, 4), sr(sAccC), mods='offen offset:%d sc1' % (j * 256))
        for j in range(8):
            a('buffer_load_dword', vr(L + 8 + j), vr(T + 1), sr(S_H, 4), sr(sAccC), mods='offen offset:%d sc1' % (2048 + j * 256))

    def o_ops(s):
        ops = []
        o = lambda mn, *x, **k: ops.append(mkop(mn, *x, **k))
        L = acc(0, 1); PQ = acc(0, 0); T = vX + 32
        for i in range(4): o('v_cvt_pk_bf16_f32', vr(L + i), vr(L + 2 * i), vr(L + 2 * i + 1))
        for i in range(4): o('v_cvt_pk_bf16_f32', vr(L + 4 + i), vr(L + 8 + 2 * i), vr(L + 8 + 2 * i + 1))
        for h in range(2):
            o(MF, vr(vX + 16 * h, 16), vr(L + 4 * h, 4), vr(PQ + 4 * h, 4), '0')
        ops += ['GAP'] * 6
        for h in range(2): o('v_add_f32', vr(T + h), lit(1e-6), vr(vX + 16 * h + 8))
        for h in range(2): o('v_rcp_f32', vr(T + h), vr(T + h))
        for h in range(2):
            DD = vX + 16 * h
            for r in range(8): o('v_mul_f32', vr(DD + r), vr(DD + r), vr(T + h))
            for i in range(4): o('v_cvt_pk_bf16_f32', vr(T + 4 + 4 * h + i), vr(DD + 2 * i), vr(DD + 2 * i + 1))
            o('s_add_u32', sr(sT2), sr(sHo), str(h * 1024))
            o('buffer_store_dwordx4', vr(T + 4 + 4 * h, 4), vr(vL16), sr(S_H, 4), sr(sT2), mods='offen sc1')
        return ops

    def kv_atomics(s):
        a = s.a
        t = acc(1, 1) if P('ORDO', 1) else acc(0, 1)
        a('v_add_u32', vr(vTA), sr(sM0), vr(vL16))
        a('v_add_u32', vr(vTA), hex(KVL), vr(vTA))
        for m in range(4):
            a('ds_read_b128', vr(t + 4 * m, 4), vr(vTA), mods='offset:%d' % (m * 8192))
        for i in range(4): a('v_add_f32', vr(t + i), vr(t + i), vr(t + 4 + i))
        for i in range(4): a('v_add_f32', vr(t + 8 + i), vr(t + 8 + i), vr(t + 12 + i))
        for i in range(4): a('v_add_f32', vr(t + i), vr(t + i), vr(t + 8 + i))
        a('v_lshrrev_b32', vr(vTA + 1), '2', vr(vL16))
        a('s_add_u32', sr(sT1), sr(sAcc), sr(sM0))
        for r in range(4):
            a('buffer_atomic_add_f32', vr(t + r), vr(vTA + 1), sr(S_H, 4), sr(sT1), mods='offen offset:%d' % (r * 256), tag='kvat' if r == 3 else None)

    def main(s):
        a = s.a; typ = s.typ
        s.setup()
        a.stamp(2)
        steps = [(r, kk) for r in range(3) for kk in range(32)]
        issue_at = {}
        for n, (r, kk) in enumerate(steps):
            t = n - 2 if (s.pair(r) and kk >= 1) else n - 1
            issue_at.setdefault(t, []).append(n)
        bar_after = {}
        for n, (r, kk) in enumerate(steps):
            per = 8 if s.pair(r) else 4
            if kk % per == 0:
                t_issue = [t for t, l in issue_at.items() if n in l][0]
                bar_after.setdefault(t_issue - 1, []).append(s.wst[(r, kk // per)])
        def do_reads(t, u, units):
            for n in issue_at.get(t, []):
                r2, kk2 = steps[n]
                u2n = 1 if s.pair(r2) else 2
                if s.rounds[r2] == 'P2' and kk2 == 0 and u == 0:
                    tb = vXa if r2 == 1 else vG
                    s.lq_bases('P2', [tb, tb + 1, tb + 2, tb + 3])
                if r2 > 0 and s.rounds[r2 - 1] == 'P2' and kk2 == 0 and u == 0:
                    s.lq_bases('Q', [vG, vG + 1, vG + 2, vG + 3])
                if units == 2 and u2n == 2:
                    s.wread(r2, kk2, only_u=u, xpart=(u == 0))
                elif u == units - 1:
                    s.wread(r2, kk2)
        def w0poll(items):
            a('s_cmp_eq_u32', sr(sW), '0')
            regs = [sW0a, sW0b]
            a('s_mov_b32', sr(sT1), hex(OOB))
            for k, (srd_, so, v) in enumerate(items):
                a('s_cselect_b32', sr(regs[k]), sr(so), sr(sT1))
            for k, (srd_, so, v) in enumerate(items):
                s.poll(srd_, regs[k], v)
        def h3():
            if 'noev' in EXP: return
            s.w0_spin('a', [(S_DBG, sArow, 1, vTA + 6), (S_DBG, sAcol, 1, vTA + 7)])
            s.signal([sRowCnt, sColCnt], vT4, vT4 + 1)
        def hB():
            if 'noev' in EXP: return
            w0poll([(S_DBG, sArow, vTA + 6), (S_DBG, sAcol, vTA + 7)])
            s.prebar.append(lambda: a.wait_tag('pub'))
            s.postbar.append(h3)
        if P('EARLYPRE', 1):
            w0poll([(S_DBG, sArow, vTA + 6), (S_DBG, sAcol, vTA + 7)])
            def h2():
                s.prebar.append(lambda: a.wait_tag('pub'))
                s.postbar.append(h3)
            s.postbar.append(h2)
        else:
            s.fq += [('UNTIL', P('PRE0', 7))] + group_flags(s.row_stats_ops()) + group_flags(s.cs_slice_ops())
            s.fq.append(lambda: (a.stamp(45), s.postbar.append(hB)))
        if typ == 'O':
            s.prebar.append(lambda: a.wait_tag('zkv'))
            s.postbar.append(s.announce_kv)
        for st in bar_after.get(-2, []):
            s.bar(st); a.stamp(16); a.lstamp(0)
        do_reads(-1, 0, 1)
        if 'nolate' not in EXP and not P('EARLYPRE', 1):
            for f in s.late_loads(): f()
        if P('SPF', 1): s.fq.insert(0, lambda: s.sparse_pf(1)); s.fq.insert(0, ('UNTIL', P('SPF1', 3)))
        events = {}
        if P('EARLYPRE', 1):
            e1, e2, e3 = (0, P('EV1', 13)), (0, P('EV2', 21)), (0, P('EV3', 23))
        else:
            e1, e2, e3 = (0, 28), (0, 31), (1, 3)
        events[e1] = lambda: w0poll([(S_H, sRowCnt, vTA + 6), (S_H, sColCnt, vTA + 7)])
        events[e2] = lambda: (a.stamp(46), s.w0_spin('b', [(S_H, sRowCnt, 16, vTA + 6), (S_H, sColCnt, 16, vTA + 7)]), s.set_flag(vTA + 7, vTA + 6, 0), a.stamp(47))
        events[e3] = lambda: (s.check_all('b', vTA + 7, vTA + 6, 0), s.gather_loads(), s.fq.extend([('UNTIL', P('GF', 29))] + group_flags(s.gather_finish())) if P('EARLYPRE', 1) else None)
        if 'nopf' not in EXP and P('PFPOS', 10) >= 0: events[(2, P('PFPOS', 10))] = s.l2_prefetch
        if typ == 'E':
            events[(2, 16)] = lambda: w0poll([(S_H, sDoneC, vTA + 7)])
            events[(2, 24)] = lambda: (s.w0_spin('d', [(S_H, sDoneC, 16, vTA + 7)]), s.set_flag(vTA + 7, vTA + 6, 1))
            events[(2, 30)] = lambda: (s.check_all('d', vTA + 7, vTA + 6, 1), s.o_loads())
        for n, (r, kk) in enumerate(steps):
            rn = s.rounds[r]
            units = 1 if s.pair(r) else 2
            s.cur = n
            if (r, kk) in events and 'noev' not in EXP: events[(r, kk)]()
            if 'r2fine' in EXP:
                if r == 2 and kk % 4 == 0: a.stamp(50 + kk // 4)
            elif kk % 16 == 0 and kk > 0: a.stamp(24 + r * 4 + kk // 8)
            setn = r % 2
            nf = s.fillrate(r, kk, units)
            for u in range(units):
                Dd = acc(setn, u)
                C = '0' if kk == 0 else vr(Dd, 16)
                wf = vr(s.wbuf(r, kk, u), 4)
                if rn == 'KV':
                    a(MF, vr(Dd, 16), vr(xfr(kk), 4), wf, C)
                else:
                    a(MF, vr(Dd, 16), wf, vr(xfr(kk), 4), C)
                do_reads(n, u, units)
                if u == units - 1 and (r == 0 or (kk % 2 == 0) or len(s.dq) > 1): s.dma_half()
                s.fill(nf)
            for st in bar_after.get(n, []):
                s.bar(st)
                if r == 0 and n < 28 and 'finest' in EXP: a.stamp(50 + n // 4)
            if kk == 31:
                s.flush()
                a.stamp(4 + r); a.lstamp(1 + r)
                s.push_epilogue(r)
        s.flush()
        if P('PFPOS', 10) < 0: s.l2_prefetch()
        a.stamp(7)
        if getattr(a, 'stamps', False):
            a.raw('  s_waitcnt vmcnt(0)')
        a.stamp(8)
        a.stamp(9, real=True)
        a.lstamp_collect(0)
        a.stamp_out(22, 's2', sr(sW), 0xA00000, vreg=0, tmpv=vT4, tmps=sT1)
        a.raw('  s_endpgm')

    def fillrate(s, r, kk, units):
        if r == 0: return P('F0', 6)
        if units == 1: return P('FP', 6)
        return P('FQ', 4)

    def push_epilogue(s, r):
        rn = s.rounds[r]; setn = r % 2
        a = s.a
        q = s.fq
        if r == 0:
            if not P('EARLYPRE', 1):
                q.append(('UNTIL', 32 + P('GW', 8)))
                q += group_flags(s.gather_finish())
            q.append('WAITBAR')
        q += s.ext_ops(r)
        if rn in ('GU0', 'GU1'):
            hreg = sHq if rn == 'GU0' else sHq2
            g = s.ep_geglu(acc(setn, 0), acc(setn, 1), 16, hreg, [0, 1024])
            q += g
        elif rn == 'P2':
            q += s.ep_geglu(acc(setn, 0), acc(setn, 0) + 8, 8, sHq2, [0])
        elif rn == 'QP':
            q += s.phi_ops(acc(setn, 0), 16, lambda i: vRS)
            q += [x for x in s.o_ops() if not (isinstance(x, str) and x == 'GAP')]
        elif rn == 'KV':
            q += s.ep_kv(setn)
            def after():
                a.stamp(10)
                a('s_lshl_b32', sr(sW0b), sr(sP), '2')
                a('s_add_u32', sr(sW0b), sr(sW0b), '192')
                s.poll(S_DBG, sW0b, vTA + 7)
                def post1():
                    a.stamp(11)
                    s.all_spin('z', S_DBG, sW0b, 1, vTA + 7)
                    s.kv_atomics()
                    a.stamp(12)
                    def arm():
                        s.prebar.append(lambda: (a.stamp(14), a.wait_tag('kvat'), a.stamp(15)))
                        s.postbar.append(lambda: (a.stamp(13), s.signal([sDoneC], vTA + 3, vTA + 4)))
                    s.postbar.append(arm)
                s.postbar.append(post1)
            q.append(after)
```

```python
from k1 import *
import k1 as K

STB = FLG + 64
CT4 = STB + 1024
assert CT4 + 1024 <= SCR
sMq, sMx = 12, 13
sLead = 19

def prologue(a):
    st = getattr(a, 'stamps', False)
    a.raw('  s_cmp_ge_u32 s2, 256')
    a.raw('  s_cbranch_scc1 L_k1_exit')
    if st:
        a.raw('  s_memtime s[96:97]')
        a.raw('  s_memrealtime s[98:99]')
    a.raw('  s_load_dwordx16 s[4:19], s[0:1], 0')
    a.raw('  s_load_dwordx4 s[20:23], s[0:1], 64')
    a.raw('  s_getpc_b64 s[%d:%d]' % (sPC, sPC + 1))
    a.label('L_k1_pc')
    L = vTA; t = vP
    a('v_and_b32', vr(L), '63', 'v0')
    a('v_lshrrev_b32', vr(t), '6', 'v0')
    a('v_lshlrev_b32', vr(vL16), '4', vr(L))
    a('v_readfirstlane_b32', sr(sW), vr(t))
    a('s_and_b32', sr(sT0), 's2', '7')
    a('s_lshr_b32', sr(sSlot), 's2', '3')
    a('s_lshr_b32', sr(sT1), sr(sT0), '1')
    a('s_and_b32', sr(sB), sr(sT0), '1')
    a('s_lshr_b32', sr(sT2), sr(sSlot), '2')
    a('s_lshl_b32', sr(sT3), sr(sB), '3')
    a('s_add_u32', sr(sJ), sr(sT2), sr(sT3))
    a('s_and_b32', sr(sTyp), sr(sJ), '1')
    a('s_lshr_b32', sr(sP), sr(sJ), '1')
    a('s_lshl_b32', sr(sI), sr(sT1), '2')
    a('s_and_b32', sr(sT2), sr(sSlot), '3')
    a('s_add_u32', sr(sI), sr(sI), sr(sT2))
    a('s_and_b32', sr(sM), sr(sW), '3')
    a('s_lshr_b32', sr(sC), sr(sW), '2')
    a('s_lshl_b32', sr(sT4), sr(sTyp), '1')
    a('s_add_u32', sr(sT4), sr(sT4), sr(sC))
    labs = ['L_k1_ED', 'L_k1_ES', 'L_k1_OD', 'L_k1_OS']
    a.raw('  s_mov_b32 s%d, %s-L_k1_pc' % (sT3, labs[0])); a.pos += 1
    for k in range(1, 4):
        a.raw('  s_mov_b32 s%d, %s-L_k1_pc' % (sT2, labs[k])); a.pos += 1
        a('s_cmp_eq_u32', sr(sT4), str(k))
        a('s_cselect_b32', sr(sT3), sr(sT2), sr(sT3))
    a('s_add_u32', sr(sPC), sr(sPC), sr(sT3))
    a('s_addc_u32', sr(sPC + 1), sr(sPC + 1), '0')
    a('s_lshl_b32', sr(sT0), sr(sM), '10')
    a('v_add_u32', vr(t + 7), sr(sT0), vr(vL16))
    a('global_load_dwordx4', vr(vX + 112, 4), vr(t + 7), sr(sPC, 2))
    a('s_lshl_b32', sr(sXoff), sr(sI), '17')
    a('s_lshl_b32', sr(sM0), sr(sW), '10')
    a('s_lshl_b32', sr(sQo), sr(sP), '7')
    a('s_mul_i32', sr(sT0), sr(sP), '224')
    a('s_and_b32', sr(sT1), sr(sP), '1')
    a('s_lshl_b32', sr(sT1), sr(sT1), '1')
    a('s_add_u32', sr(sT1), sr(sT1), sr(sTyp))
    a('s_mov_b32', sr(sT2), '0'); a('s_mov_b32', sr(sT3), '64')
    a('s_cmp_eq_u32', sr(sT1), '1'); a('s_cselect_b32', sr(sT2), '128', sr(sT2)); a('s_cselect_b32', sr(sT3), '192', sr(sT3))
    a('s_cmp_eq_u32', sr(sT1), '2'); a('s_cselect_b32', sr(sT2), '96', sr(sT2)); a('s_cselect_b32', sr(sT3), '160', sr(sT3))
    a('s_cmp_eq_u32', sr(sT1), '3'); a('s_cselect_b32', sr(sT2), '32', sr(sT2)); a('s_cselect_b32', sr(sT3), '0', sr(sT3))
    a('s_add_u32', sr(sT2), sr(sT2), sr(sT0))
    a('s_add_u32', sr(sT3), sr(sT3), sr(sT0))
    a('s_lshl_b32', sr(sFo), sr(sT2), '1')
    a('s_lshl_b32', sr(sFo2), sr(sT3), '1')
    if st:
        a.raw('  v_mov_b32 v%d, v0' % (vP + 6))
    for k in range(1, 4):
        a('s_cmp_eq_u32', sr(sT4), str(k))
        a.raw('  s_cbranch_scc1 %s' % labs[k]); a.pos += 1

def d_voffs(a):
    L = vTA; t = vP
    a('v_lshrrev_b32', vr(t), '3', vr(L))
    a('v_and_b32', vr(t + 1), '7', vr(L))
    a('s_lshl_b32', sr(sT0), sr(sM), '5')
    a('v_add_u32', vr(t + 5), sr(sT0), vr(t))
    a('v_lshrrev_b32', vr(t + 2), '4', vr(L))
    a('v_xor_b32', vr(t + 2), vr(t + 1), vr(t + 2))
    a('v_lshlrev_b32', vr(t + 3), '10', vr(t + 5))
    a('v_lshl_add_u32', vr(vDc), vr(t + 2), '4', vr(t + 3))
    a('v_xor_b32', vr(vDd), '64', vr(vDc))
    a('v_add_u32', vr(vDd), '0x2000', vr(vDd))
    a('v_lshrrev_b32', vr(t + 2), '2', vr(L))
    a('v_and_b32', vr(t + 2), '4', vr(t + 2))
    a('v_xor_b32', vr(t + 1), vr(t + 1), vr(t + 2))
    a('v_lshlrev_b32', vr(t + 1), '4', vr(t + 1))
    a('s_lshl_b32', sr(sT0), sr(sM), '4')
    a('v_add_u32', vr(t + 3), sr(sT0), vr(t))
    a('v_mul_u32_u24', vr(vDa), '3584', vr(t + 3))
    a('v_add_u32', vr(vDa), vr(vDa), vr(t + 1))

def wait_kernarg(a):
    a.raw('  s_waitcnt lgkmcnt(0)')
    a.pos += 1
    if getattr(a, 'stamps', False):
        a.raw('  v_writelane_b32 v0, s96, 0')
        a.raw('  v_writelane_b32 v0, s98, 1')

class K1R(K.K1):
    def __init__(s, typ, role, a):
        K.K1.__init__(s, typ, a)
        s.role = role
        s.name = typ + role
        s.issued = 0
        s.slot = {}; s.occ = [None] * D
        s.nstep = -1
        s.last_step = {}
        for r in range(3):
            per = 8 if s.pair(r) else 4
            for kk in range(32):
                s.last_step[s.wst[(r, kk // per)]] = r * 32 + kk
                if r == 0: s.last_step[s.xst[kk // 4]] = kk

    def dma_list(s, idx):
        kind, t = s.stages[idx]
        L = []
        if kind == 'X':
            for e in range(4): L.append((sMx, e * 1024, vDc + (e & 1), S_X, sXoff, t * 128 + (e >> 1) * 16 * 1024))
        elif kind in ('GU0', 'GU1'):
            fo = sFo if kind == 'GU0' else sFo2
            for mat in range(2):
                for e in range(2): L.append((sMq, mat * 8192 + e * 1024, vDa, S_G if mat == 0 else S_U, fo, t * 64 * 3584 + e * 8 * 3584))
        elif kind == 'KV':
            for mat in range(2):
                for e in range(2): L.append((sMq, mat * 8192 + e * 1024, vDb, S_Q, sQo, t * 64 * 3072 + e * 8 * 3072 + 1024 * (mat + 1)))
        elif kind == 'QP':
            for e in range(4): L.append((sMx, e * 1024, vDb, S_Q, sQo, t * 128 * 3072 + e * 8 * 3072))
        elif kind == 'P2':
            for mat in range(2):
                for e in range(2): L.append((sMq, mat * 8192 + e * 1024, vDc + mat, S_G if mat == 0 else S_U, sFo2, t * 128 * 3584 + e * 16 * 3584))
        return L

    def dma_one(s, idx, j):
        if s.role != 'D': return
        a = s.a
        if s.stages[idx][0] == 'P2' and not s.p2ready: s.p2_voffs()
        m0reg, m0imm, voff, srd_, soff, imm = s.dma_list(idx)[j]
        if 'nodma' in EXP and idx > 3:
            if j == 3: a.tags[('dma', idx)] = ('vm', -1)
            return
        a('s_add_u32', 'm0', sr(m0reg), str(s.slot[idx] * SLOT + m0imm))
        a('s_add_u32', sr(sT0), sr(soff), str(imm))
        a('buffer_load_dwordx4', vr(voff), sr(srd_, 4), sr(sT0), mods='offen lds', tag=('dma', idx) if j == 3 else None)

    def p2_voffs(s):
        a = s.a
        a('v_lshrrev_b32', vr(vDc), '6', vr(vL16))
        a('s_lshl_b32', sr(sT0), sr(sM), '5')
        a('v_add_u32', vr(vDc), sr(sT0), vr(vDc))
        a('v_mul_u32_u24', vr(vDc), '3584', vr(vDc))
        a('v_and_b32', vr(vDd), '48', vr(vL16))
        a('v_add_u32', vr(vDc), vr(vDc), vr(vDd))
        a('v_xor_b32', vr(vDd), '32', vr(vDc))
        s.p2ready = True

    def issue_more(s, now=False, ahead=None):
        ah = K.AHEAD if ahead is None else ahead
        while s.issued < len(s.stages) and s.issued - s.landed < ah and s.alloc(s.issued):
            if now:
                for j in range(4): s.dma_one(s.issued, j)
            else:
                s.dq.append(s.issued)
            s.issued += 1

    def dma_half(s):
        if not s.dq: return
        idx = s.dq[0]
        s.dma_one(idx, s.dqh)
        s.dqh += 1
        if s.dqh == 4:
            s.dq.pop(0); s.dqh = 0

    def dma_flush(s, upto):
        while s.dq and s.dq[0] <= upto: s.dma_half()

    def bar(s, idx):
        a = s.a
        if idx is not None:
            s.dma_flush(idx)
            if s.role == 'D' and 'nowait' not in EXP: a.wait_tag(('dma', idx))
        pb, s.prebar = s.prebar, []
        for f in pb: f()
        if a.last_dsw >= 0: a.need([('lg', a.last_dsw)])
        nfree = s.freed
        while nfree < len(s.stages) and s.last_step[nfree] <= s.nstep: nfree += 1
        a.barrier()
        s.freed = nfree
        if idx is not None: s.landed = idx + 1
        s.issue_more()
        if s.fq and isinstance(s.fq[0], str) and s.fq[0] == 'WAITBAR': s.fq.pop(0)
        pb, s.postbar = s.postbar, []
        for f in pb: f()

    def lead_off(s, dst, src):
        a = s.a
        a('s_cmp_eq_u32', sr(sW), '4')
        a('s_mov_b32', sr(sT1), hex(OOB))
        a('s_cselect_b32', sr(dst), sr(src), sr(sT1))

    def lane0(s, t0, t1):
        a = s.a
        a('s_cmp_eq_u32', sr(sW), '4')
        a('s_cselect_b32', sr(sT1), '0', '16')
        a('v_add_u32', vr(t0), sr(sT1), vr(vL16))
        a('v_mov_b32', vr(t1), hex(OOB))
        a('v_cmp_ne_u32', 'vcc', '0', vr(t0))
        a('v_cndmask_b32', vr(t0), vr(t0), vr(t1))
        a('v_mov_b32', vr(t1), '1')

    def signal(s, soffs, t0, t1):
        a = s.a
        s.lane0(t0, t1)
        for so in soffs:
            a('buffer_atomic_add', vr(t1), vr(t0), sr(S_H, 4), sr(so), mods='offen')

    def lead_spin(s, name, checks):
        a = s.a
        regs = [sT2, sT3]
        for k, (_, _, _, v) in enumerate(checks): a('v_readfirstlane_b32', sr(regs[k]), vr(v))
        if 'nospin' in EXP: return
        L = 'L_%s%s' % (name, s.name)
        a('s_cmp_eq_u32', sr(sW), '4')
        a.raw('  s_cbranch_scc0 %s_ok' % L)
        a.raw('  s_mov_b32 %s, 0' % sr(sSpin))
        a.label(L + '_chk')
        for k, (_, _, tgt, _) in enumerate(checks):
            a.raw('  s_cmp_ge_u32 %s, %d' % (sr(regs[k]), tgt))
            a.raw('  s_cbranch_scc0 %s_spin' % L)
        a.raw('  s_branch %s_ok' % L)
        a.label(L + '_spin')
        a.raw('  s_sleep 4')
        for k, (srd_, soff, _, v) in enumerate(checks):
            a.raw('  buffer_load_dword %s, off, %s, %s sc1' % (vr(v), sr(srd_, 4), sr(soff)))
        a.raw('  s_waitcnt vmcnt(0)')
        for k, (_, _, _, v) in enumerate(checks):
            a.raw('  v_readfirstlane_b32 %s, %s' % (sr(regs[k]), vr(v)))
        a.raw('  s_add_u32 %s, %s, 1' % (sr(sSpin), sr(sSpin)))
        a.raw('  s_cmp_lt_u32 %s, 0x100000' % sr(sSpin))
        a.raw('  s_cbranch_scc1 %s_chk' % L)
        a.label(L + '_ok')
        a.pos += 3
        a.nop(2)

    def lead_poll(s, items):
        regs = [sW0a, sW0b]
        for k, (srd_, so, v) in enumerate(items): s.lead_off(regs[k], so)
        for k, (srd_, so, v) in enumerate(items): s.poll(srd_, regs[k], v)

    def set_flag(s, vreg, vtmp, flagidx):
        a = s.a
        a('s_cmp_eq_u32', sr(sW), '4')
        a('s_mov_b32', sr(sT3), hex(DUMMY))
        a('s_cselect_b32', sr(sT3), hex(FLG + 4 * flagidx), sr(sT3))
        a('v_mov_b32', vr(vtmp), sr(sT3))
        a('v_mov_b32', vr(vreg), '1')
        a('ds_write_b32', vr(vtmp), vr(vreg))

    def check_all(s, name, vreg, vtmp, flagidx):
        a = s.a
        a('v_mov_b32', vr(vtmp), hex(FLG + 4 * flagidx))
        a('ds_read_b32', vr(vreg), vr(vtmp))
        a('v_readfirstlane_b32', sr(sT2), vr(vreg))
        if 'nospin' in EXP: return
        L = 'L_%s%s' % (name, s.name)
        a('s_cmp_lg_u32', sr(sT2), '0')
        a.raw('  s_cbranch_scc1 %s_ok2' % L)
        a.raw('  s_mov_b32 %s, 0' % sr(sSpin))
        a.label(L + '_lds')
        a.raw('  s_sleep 1')
        a.raw('  ds_read_b32 %s, %s' % (vr(vreg), vr(vtmp)))
        a.raw('  s_waitcnt lgkmcnt(0)')
        a.raw('  v_readfirstlane_b32 %s, %s' % (sr(sT2), vr(vreg)))
        a.raw('  s_add_u32 %s, %s, 1' % (sr(sSpin), sr(sSpin)))
        a.raw('  s_cmp_ge_u32 %s, 0x1000000' % sr(sSpin))
        a.raw('  s_cbranch_scc1 %s_ok2' % L)
        a.raw('  s_cmp_eq_u32 %s, 0' % sr(sT2))
        a.raw('  s_cbranch_scc1 %s_lds' % L)
        a.label(L + '_ok2')
        a.pos += 2
        a.nop(2)

    def common_setup(s):
        a = s.a; typ = s.typ
        a('s_lshl_b32', sr(sAcc), sr(sP), '13')
        a('s_add_u32', sr(sAcc), sr(sAcc), hex(ACC_OFF))
        a('s_lshl_b32', sr(sT0), sr(sI), '2')
        a('s_add_u32', sr(sT0), sr(sT0), sr(sM))
        a('s_mul_i32', sr(sHb), sr(sT0), str(144 * 1024))
        a('s_mov_b32', sr(sMask), '0xffff'); a('s_mov_b32', sr(sMask + 1), '0xffff')
        a('s_lshl_b32', sr(sT0), sr(sC), '12')
        a('s_add_u32', sr(sAccC), sr(sAcc), sr(sT0))
        a('s_lshl_b32', sr(sT0), sr(sC), '7')
        a('s_add_u32', sr(sCT), sr(sT0), hex(CTB))
        a('s_lshl_b32', sr(sT0), sr(sFo), '5')
        a('s_add_u32', sr(sHq), sr(sHb), sr(sT0))
        a('s_lshl_b32', sr(sT1), sr(sC), '11')
        a('s_add_u32', sr(sHq), sr(sHq), sr(sT1))
        a('s_lshl_b32', sr(sT0), sr(sFo2), '5')
        a('s_add_u32', sr(sHq2), sr(sHb), sr(sT0))
        if typ == 'E':
            a('s_add_u32', sr(sHq2), sr(sHq2), sr(sT1))
            a('s_lshl_b32', sr(sT0), sr(sP), '12')
            a('s_add_u32', sr(sHo), sr(sHb), sr(sT0))
            a('s_add_u32', sr(sHo), sr(sHo), sr(sT1))
            a('s_add_u32', sr(sHo), sr(sHo), str(112 * 1024))
        else:
            a('s_lshl_b32', sr(sT1), sr(sC), '10')
            a('s_add_u32', sr(sHq2), sr(sHq2), sr(sT1))
            a('v_mov_b32', vr(vOnes), '0x3f803f80')
        a('v_mov_b32', vr(vXE + 1), '0'); a('v_mov_b32', vr(vWE + 1), '0')
        s.lq_bases('Q', [vT4, vT4 + 1, vT4 + 2, vT4 + 3])
        t = vT4
        a('v_bfe_u32', vr(t), vr(vL16), '4', '5')
        a('s_lshl_b32', sr(sT0), sr(sM), '5')
        a('v_add_u32', vr(t + 1), sr(sT0), vr(t))
        a('v_lshlrev_b32', vr(t + 1), '7', vr(t + 1))
        a('v_bfe_u32', vr(t + 2), vr(vL16), '5', '3')
        a('v_lshrrev_b32', vr(t + 3), '9', vr(vL16))
        a('v_xor_b32', vr(t + 2), vr(t + 2), vr(t + 3))
        for kq in range(4):
            a('v_xor_b32', vr(t + 3), str(2 * kq), vr(t + 2))
            a('v_lshl_add_u32', vr(vP + kq), vr(t + 3), '4', vr(t + 1))
            a('v_add_u32', vr(vP + 4 + kq), '0x10000', vr(vP + kq))

    def more_code_pf(s, nk):
        a = s.a
        a('s_lshl_b32', sr(sT0), sr(sM), '10')
        a('v_add_u32', vr(vTA + 6), sr(sT0), vr(vL16))
        for i in range(nk):
            a('v_add_u32', vr(vTA + 6), '0x1000', vr(vTA + 6))
            a('global_load_dwordx4', vr(vX + 116 + 4 * (i % 3), 4), vr(vTA + 6), sr(sPC, 2))

    def setup_D(s):
        a = s.a
        d_voffs(a)
        t = vP
        if s.typ == 'E':
            a('v_mul_u32_u24', vr(vDb), '3072', vr(t + 5))
        else:
            a('v_mul_u32_u24', vr(vDb), '3072', vr(t + 3))
        a('v_add_u32', vr(vDb), vr(vDb), vr(t + 1))
        wait_kernarg(a)
        srd(a, S_X, 4, 2048 * 1024)
        if s.typ == 'E':
            srd(a, S_G, 12, 512 * 3584); srd(a, S_U, 14, 512 * 3584)
        else:
            srd(a, S_Q, 6, 512 * 3072)
        if s.typ == 'O': srd(a, S_G, 12, 512 * 3584)
        a('s_lshl_b32', sr(sMq), sr(sM), '11')
        a('s_lshl_b32', sr(sMx), sr(sM), '12')
        if 'startup' in EXP: a.lstamp(0)
        s.issue_more(now=True, ahead=2)
        if 'startup' in EXP: a.lstamp(1)
        if s.typ == 'E': srd(a, S_Q, 6, 512 * 3072)
        else: srd(a, S_U, 14, 512 * 3584)
        srd(a, S_H, 22, WS_BYTES)
        s.common_setup()
        s.issue_more(now=True, ahead=4)
        if 'startup' in EXP: a.lstamp(2)
        s.fq.append(lambda: s.more_code_pf(3))

    def setup_S(s):
        a = s.a; typ = s.typ
        t = vTA + 1
        L = vTA
        a('s_lshl_b32', sr(sT0), sr(sI), '7')
        a('s_lshl_b32', sr(sT1), sr(sJ), '3')
        a('s_add_u32', sr(sT0), sr(sT0), sr(sT1))
        a('s_lshl_b32', sr(sT1), sr(sM), '1')
        a('s_add_u32', sr(sT5), sr(sT0), sr(sT1))
        a('s_lshl_b32', sr(sF0), sr(sT5), '10')
        if typ == 'E':
            cands = [(S_G, 12, sFo, 0), (S_U, 14, sFo, 0), (S_Q, 6, sQo, 0), (S_G, 12, sFo2, 0)]
        else:
            cands = [(S_Q, 6, sQo, 1024), (S_Q, 6, sQo, 2048), (S_G, 12, sFo, 0), (S_U, 14, sFo, 0)]
        rs = lambda c: '3072' if c[0] == S_Q else '3584'
        a('s_add_u32', sr(sT7), sr(cands[0][2]), str(cands[0][3]))
        a('s_mov_b32', sr(sT8), rs(cands[0]))
        for sg in range(1, 4):
            c = cands[sg]
            a('s_add_u32', sr(sT1), sr(c[2]), str(c[3]))
            a('s_cmp_eq_u32', sr(sM), str(sg))
            a('s_cselect_b32', sr(sT7), sr(sT1), sr(sT7))
            a('s_cselect_b32', sr(sT8), rs(c), sr(sT8))
        a('v_lshrrev_b32', vr(t + 1), '3', vr(L))
        a('v_and_b32', vr(t + 2), '7', vr(L))
        a('v_lshrrev_b32', vr(t + 3), '2', vr(L))
        a('v_and_b32', vr(t + 3), '4', vr(t + 3))
        a('v_xor_b32', vr(t + 2), vr(t + 2), vr(t + 3))
        a('v_lshlrev_b32', vr(t + 2), '4', vr(t + 2))
        a('v_mul_lo_u32', vr(t), vr(t + 1), sr(sT8))
        a('v_add_u32', vr(t), vr(t), vr(t + 2))
        a('s_lshl_b32', sr(sT0), sr(sI), '5')
        a('s_mul_i32', sr(sT0), sr(sT0), sr(sT8))
        a('s_add_u32', sr(sT7), sr(sT7), sr(sT0))
        a('s_lshl_b32', sr(sT8), sr(sT8), '3')
        a('s_lshl_b32', sr(sT0), sr(sM), '12')
        a('s_add_u32', sr(sHq), sr(sT0), hex(SCR))
        if typ == 'E':
            a('v_mul_u32_u24', vr(t + 3), '3584', vr(t + 1))
            a('v_add_u32', vr(t + 3), vr(t + 3), vr(t + 2))
            voffs = [t + 3] * 4; rowstep = [0, 8, 16, 24]; srds = [S_U] * 4
        else:
            a('v_lshrrev_b32', vr(t + 3), '2', vr(L))
            a('v_mul_u32_u24', vr(t + 3), '3584', vr(t + 3))
            a('v_and_b32', vr(t + 4), '48', vr(vL16))
            a('v_add_u32', vr(t + 3), vr(t + 3), vr(t + 4))
            a('v_xor_b32', vr(t + 4), '32', vr(t + 3))
            voffs = [t + 3, t + 3, t + 4, t + 4]; rowstep = [0, 16, 0, 16]; srds = [S_G, S_G, S_U, S_U]
        a('s_mul_i32', sr(sT0), sr(sI), str(32 * 3584))
        a('s_add_u32', sr(sT2), sr(sT0), sr(sFo2))
        a('s_cmp_eq_u32', sr(sM), '0')
        a('s_cselect_b32', sr(sT2), sr(sT2), hex(OOB - 0x100000))
        a('s_mov_b32', sr(sT1), hex(SCR + 5 * 4096))
        a('s_cselect_b32', sr(sT3), hex(SCR + 4 * 4096), sr(sT1))
        wait_kernarg(a)
        srd(a, S_X, 4, 2048 * 1024)
        srd(a, S_Q, 6, 512 * 3072); srd(a, S_G, 12, 512 * 3584); srd(a, S_U, 14, 512 * 3584)
        a('s_mov_b32', sr(sScr), sr(sHq))
        a('s_mov_b32', sr(sO3), sr(sT3))
        a('s_mov_b32', sr(sO2), sr(sT2))
        for k in range(3): a('s_mov_b32', sr(S_T0 + k), sr(cands[0][0] + k))
        for sg in range(1, 4):
            a('s_cmp_eq_u32', sr(sM), str(sg))
            for k in range(3): a('s_cselect_b32', sr(S_T0 + k), sr(cands[sg][0] + k), sr(S_T0 + k))
        a('s_mov_b32', sr(S_T0 + 3), '0x20000')
        def pre_loads():
            a('buffer_load_dwordx4', vr(acc(1, 0), 4), vr(vL16), sr(S_X, 4), sr(sF0), mods='offen')
            a('buffer_load_dwordx4', vr(acc(1, 0) + 4, 4), vr(vL16), sr(S_X, 4), sr(sF0), mods='offen offset:1024')
            for e in range(4):
                a('s_add_u32', 'm0', sr(sScr), str(e * 1024))
                if e > 0: a('s_add_u32', sr(sT7), sr(sT7), sr(sT8))
                else: a('s_nop', '0')
                a('buffer_load_dwordx4', vr(t), sr(S_T0, 4), sr(sT7), mods='offen lds', tag='slice1' if e == 3 else None)
            for e in range(4):
                a('s_add_u32', 'm0', sr(sO3), str(e * 1024))
                a('s_add_u32', sr(sT0), sr(sO2), str(rowstep[e] * 3584))
                a('buffer_load_dwordx4', vr(voffs[e]), sr(srds[e], 4), sr(sT0), mods='offen lds', tag='slice2' if e == 3 else None)
        s.pre_loads = pre_loads
        if P('SPF', 1): s.spf_phase(0)
        if 'startup' in EXP: a.lstamp(0)
        s.issue_more(now=True, ahead=2)
        srd(a, S_H, 22, WS_BYTES)
        a('s_lshl_b32', sr(sRowCnt), sr(sI), '8')
        a('s_add_u32', sr(sRowCnt), sr(sRowCnt), hex(ARENA))
        a('s_lshl_b32', sr(sColCnt), sr(sJ), '8')
        a('s_add_u32', sr(sColCnt), sr(sColCnt), hex(ARENA + 16 * 256))
        a('s_lshl_b32', sr(sDoneC), sr(sP), '8')
        a('s_add_u32', sr(sDoneC), sr(sDoneC), hex(ARENA + 32 * 256))
        a('s_lshl_b32', sr(sAcc), sr(sP), '13')
        a('s_add_u32', sr(sAcc), sr(sAcc), hex(ACC_OFF))
        Z = vT4
        for i in range(4): a('v_mov_b32', vr(Z + i), '0')
        s.lane0(vTA + 6, vTA + 7)
        a('s_mov_b32', sr(sT4), hex(OOB))
        a('s_cmp_eq_u32', sr(sJ), '0')
        a('s_cselect_b32', sr(sT0), sr(sRowCnt), sr(sT4))
        a('buffer_store_dword', vr(Z), vr(vTA + 6), sr(S_H, 4), sr(sT0), mods='offen sc1')
        a('s_cmp_eq_u32', sr(sI), '0')
        a('s_cselect_b32', sr(sT0), sr(sColCnt), sr(sT4))
        a('s_cselect_b32', sr(sT2), sr(sDoneC), sr(sT4))
        a('s_cselect_b32', sr(sT3), sr(sAcc), sr(sT4))
        a('buffer_store_dword', vr(Z), vr(vTA + 6), sr(S_H, 4), sr(sT0), mods='offen sc1', tag='zrc')
        if typ == 'O':
            a('buffer_store_dword', vr(Z), vr(vTA + 6), sr(S_H, 4), sr(sT2), mods='offen sc1')
            a('s_min_u32', sr(sT3), sr(sT3), hex(OOB - 0x10000))
            a('s_lshl_b32', sr(sT0), sr(sM), '11')
            a('s_add_u32', sr(sT3), sr(sT3), sr(sT0))
            a('buffer_store_dwordx4', vr(Z, 4), vr(vL16), sr(S_H, 4), sr(sT3), mods='offen sc1')
            a('buffer_store_dwordx4', vr(Z, 4), vr(vL16), sr(S_H, 4), sr(sT3), mods='offen offset:1024 sc1', tag='zkv')
        if 'startup' in EXP: a.lstamp(1)
        srd(a, S_DBG, 20, 256)
        a('s_lshl_b32', sr(sArow), sr(sI), '2')
        a('s_lshl_b32', sr(sAcol), sr(sJ), '2')
        a('s_add_u32', sr(sAcol), sr(sAcol), '128')
        s.common_setup()
        T = vT4
        a('v_mov_b32', vr(T), hex(FLG))
        a('v_mov_b32', vr(T + 2), '0'); a('v_mov_b32', vr(T + 3), '0')
        a('ds_write_b64', vr(T), vr(T + 2, 2))
        a('ds_write_b32', vr(T), vr(T + 2), mods='offset:8')
        s.issue_more(now=True, ahead=4)
        if 'startup' in EXP: a.lstamp(2)
        def late2():
            a.wait_tag('zrc')
            s.lane0(T, T + 1)
            a('s_mov_b32', sr(sT1), hex(OOB))
            a('s_cmp_eq_u32', sr(sJ), '0')
            a('s_cselect_b32', sr(sT0), sr(sArow), sr(sT1))
            a('buffer_store_dword', vr(T + 1), vr(T), sr(S_DBG, 4), sr(sT0), mods='offen sc1')
            a('s_cmp_eq_u32', sr(sI), '0')
            a('s_cselect_b32', sr(sT0), sr(sAcol), sr(sT1))
            a('buffer_store_dword', vr(T + 1), vr(T), sr(S_DBG, 4), sr(sT0), mods='offen sc1')
        s.late2 = late2

    def spf(s, entries, dst):
        a = s.a
        T = S_T1
        t0, t1 = vG, vG + 1
        real = [e for e in entries if e is not None and e[0] != 'x']
        first = real[0]
        for k in range(3): a('s_mov_b32', sr(T + k), sr(first[0] + k))
        a('s_add_u32', sr(sT3), sr(first[1]), str(first[2]))
        a('s_mov_b32', sr(sT1), str(first[3]))
        a('s_mov_b32', sr(sT4), str(first[4]))
        for m, e in enumerate(entries):
            if e is None:
                a('s_cmp_eq_u32', sr(sM), str(m))
                a('s_cselect_b32', sr(T + 2), '0', sr(T + 2))
            elif e[0] == 'x':
                a('s_cmp_eq_u32', sr(sM), str(m))
                for k in range(3): a('s_cselect_b32', sr(T + k), sr(S_X + k), sr(T + k))
                a('s_cselect_b32', sr(sT4), str(e[1]), sr(sT4))
            elif e is not first:
                a('s_add_u32', sr(sT0), sr(e[1]), str(e[2]))
                a('s_cmp_eq_u32', sr(sM), str(m))
                for k in range(3): a('s_cselect_b32', sr(T + k), sr(e[0] + k), sr(T + k))
                a('s_cselect_b32', sr(sT3), sr(sT0), sr(sT3))
                a('s_cselect_b32', sr(sT1), str(e[3]), sr(sT1))
                a('s_cselect_b32', sr(sT4), str(e[4]), sr(sT4))
        a('s_mov_b32', sr(T + 3), '0x20000')
        a('s_and_b32', sr(sT0), sr(sI), '3')
        a('s_lshl_b32', sr(sT0), sr(sT0), '1')
        a('s_add_u32', sr(sT0), sr(sT0), sr(sT4))
        a('s_lshl_b32', sr(sT0), sr(sT0), '6')
        a('v_lshrrev_b32', vr(t0), '4', vr(vL16))
        a('v_add_u32', vr(t0), sr(sT0), vr(t0))
        a('v_mul_lo_u32', vr(t0), vr(t0), sr(sT1))
        a('v_add_u32', vr(t0), sr(sT3), vr(t0))
        xs = [m for m, e in enumerate(entries) if e is not None and e[0] == 'x']
        if xs:
            a('s_and_b32', sr(sT0), sr(sJ), '7')
            a('s_lshl_b32', sr(sT0), sr(sT0), '1')
            a('s_add_u32', sr(sT0), sr(sT0), sr(sT4))
            a('s_lshl_b32', sr(sT0), sr(sT0), '3')
            a('v_lshrrev_b32', vr(t1), '7', vr(vL16))
            a('v_add_u32', vr(t1), sr(sT0), vr(t1))
            a('v_lshlrev_b32', vr(t1), '10', vr(t1))
            a('v_add_u32', vr(t1), sr(sXoff), vr(t1))
            a('v_bfe_u32', vr(vG + 2), vr(vL16), '4', '3')
            a('v_lshl_add_u32', vr(t1), vr(vG + 2), '7', vr(t1))
            a('s_cmp_le_u32', sr(sM), str(max(xs)))
            a('s_cselect_b64', 'vcc', '-1', '0')
            a('v_cndmask_b32', vr(t0), vr(t0), vr(t1))
        a('buffer_load_dword', vr(dst), vr(t0), sr(T, 4), '0', mods='offen')

    def spf_phase(s, phase):
        typ = s.typ
        if typ == 'E':
            mats = {'GU0': [(S_G, sFo, 0, 3584), (S_U, sFo, 0, 3584)], 'GU1': [(S_G, sFo2, 0, 3584), (S_U, sFo2, 0, 3584)], 'QP': [(S_Q, sQo, 0, 3072), None]}
        else:
            mats = {'KV': [(S_Q, sQo, 1024, 3072), (S_Q, sQo, 2048, 3072)], 'P2': [(S_G, sFo2, 0, 3584), (S_U, sFo2, 0, 3584)], 'GU0': [(S_G, sFo, 0, 3584), (S_U, sFo, 0, 3584)]}
        R = [mats[r] for r in s.rounds]
        e = lambda mt, h: None if mt is None else mt + (h,)
        if phase == 0:
            s.spf([('x', 0), ('x', 1), e(R[0][0], 0), e(R[0][0], 1)], vX + 120)
            s.spf([e(R[0][1], 0), e(R[0][1], 1), e(R[1][0], 0), e(R[1][0], 1)], vX + 121)
        else:
            s.spf([e(R[1][1], 0), e(R[1][1], 1), e(R[2][0], 0), e(R[2][0], 1)], vX + 122)
            if R[2][1] is not None: s.spf([e(R[2][1], 0), e(R[2][1], 1), None, None], vX + 123)

    def announce_kv(s):
        a = s.a
        T = vT4
        s.lane0(T, T + 1)
        a('s_lshl_b32', sr(sT0), sr(sP), '2')
        a('s_add_u32', sr(sT0), sr(sT0), '192')
        a('s_cmp_eq_u32', sr(sI), '0')
        a('s_cselect_b32', sr(sT0), sr(sT0), hex(OOB))
        a('buffer_store_dword', vr(T + 1), vr(T), sr(S_DBG, 4), sr(sT0), mods='offen sc1')

    def row_stats_ops(s):
        ops = []
        a = lambda mn, *x, **k: ops.append(mkop(mn, *x, **k))
        B = acc(1, 0)
        Xs = [B, B + 4]; As = [B + 8, B + 10]; ones = B + 12
        a('v_mov_b32', vr(ones), '0x3f803f80')
        for X, A in zip(Xs, As):
            a('v_dot2_f32_bf16', vr(A), vr(X), vr(ones), '0')
            a('v_dot2_f32_bf16', vr(A + 1), vr(X), vr(X), '0')
        for i in range(1, 4):
            for X, A in zip(Xs, As):
                a('v_dot2c_f32_bf16', vr(A), vr(X + i), vr(ones))
                a('v_dot2c_f32_bf16', vr(A + 1), vr(X + i), vr(X + i))
        R4 = [As[0], As[0] + 1, As[1], As[1] + 1]
        for dpp in ('row_shr:1', 'row_shr:2', 'row_shr:4', 'row_shr:8'):
            for r in R4: a('v_add_f32_dpp', vr(r), vr(r), vr(r), mods='%s row_mask:0xf bank_mask:0xf bound_ctrl:0' % dpp)
        for dpp, rm in (('row_bcast:15', '0xa'), ('row_bcast:31', '0xc')):
            for r in R4: a('v_add_f32_dpp', vr(r), vr(r), vr(r), mods='%s row_mask:%s bank_mask:0xf' % (dpp, rm))
        def both(f):
            for A in As: f(A)
        def rbf(r):
            a('v_cvt_pk_bf16_f32', vr(r), vr(r), vr(r)); a('v_lshlrev_b32', vr(r), '16', vr(r))
        both(lambda A: a('v_mul_f32', vr(A), lit(1.0 / 512), vr(A)))
        both(lambda A: a('v_mul_f32', vr(A + 1), lit(1.0 / 512), vr(A + 1)))
        both(lambda A: a('v_fma_f32', vr(A + 1), '-' + vr(A), vr(A), vr(A + 1)))
        both(lambda A: a('v_max_f32', vr(A + 1), '0', vr(A + 1)))
        both(lambda A: rbf(A)); both(lambda A: rbf(A + 1))
        both(lambda A: a('v_add_f32', vr(A + 1), lit(1e-5), vr(A + 1)))
        both(lambda A: rbf(A + 1))
        both(lambda A: a('v_sqrt_f32', vr(A + 1), vr(A + 1)))
        both(lambda A: rbf(A + 1))
        O = B + 13
        a('v_mov_b32', vr(O), hex(OOB))
        a('v_mov_b32', vr(O + 1), '0')
        a('v_cmp_eq_u32', 'vcc', '1008', vr(vL16))
        a('v_cndmask_b32', vr(O), vr(O), vr(O + 1))
        a('s_lshl_b32', sr(sF0), sr(sT5), '3')
        a('s_add_u32', sr(sF0), sr(sF0), hex(STAT_OFF))
        a('buffer_store_dwordx2', vr(As[0], 2), vr(O), sr(S_H, 4), sr(sF0), mods='offen sc1')
        a('buffer_store_dwordx2', vr(As[1], 2), vr(O), sr(S_H, 4), sr(sF0), mods='offen offset:8 sc1')
        return ops

    def cs_slice_ops(s, npass):
        ops = []
        typ = s.typ
        a = lambda mn, *x, **k: ops.append(mkop(mn, *x, **k))
        t = acc(1, 0) + 8; P = acc(1, 0)
        p2 = (npass == 2 and typ == 'O')
        if npass == 1:
            a('v_bfe_u32', vr(t), vr(vL16), '4', '4')
            a('v_bfe_u32', vr(t + 1), vr(vL16), '8', '1')
            a('v_cmp_eq_u32', 'vcc', vr(t), vr(t + 1))
            a('v_mov_b32', vr(t + 2), '0x3f803f80')
            a('v_mov_b32', vr(t + 3), '0')
            for i in range(4): a('v_cndmask_b32', vr(vSel + i), vr(t + 3), vr(t + 2))
        a('v_lshrrev_b32', vr(P), '9', vr(vL16))
        a('v_lshlrev_b32', vr(P), '3', vr(P))
        a('v_bfe_u32', vr(P + 1), vr(vL16), '6', '2')
        a('v_add_u32', vr(P), vr(P), vr(P + 1))
        a('v_bfe_u32', vr(P + 1), vr(vL16), '8', '1')
        a('v_bfe_u32', vr(P + 2), vr(vL16), '5', '1')
        a('v_bfe_u32', vr(P + 3), vr(vL16), '4', '1')
        if not p2:
            a('v_lshl_add_u32', vr(P + 4), vr(P + 1), '1', vr(P + 2))
            a('v_bfe_u32', vr(P + 5), vr(vL16), '7', '1')
            a('v_lshlrev_b32', vr(P + 5), '2', vr(P + 5))
            a('v_xor_b32', vr(P + 4), vr(P + 4), vr(P + 5))
            a('v_lshlrev_b32', vr(P + 4), '4', vr(P + 4))
            a('v_lshl_add_u32', vr(P + 4), vr(P), '7', vr(P + 4))
            a('v_lshl_add_u32', vr(P + 4), vr(P + 3), '3', vr(P + 4))
            a('v_add_u32', vr(P + 4), sr(sScr if npass == 1 else sO3), vr(P + 4))
            a('v_xor_b32', vr(P + 5), '64', vr(P + 4))
            stride = 512
        else:
            a('v_lshlrev_b32', vr(P + 4), '1', vr(P + 1))
            a('v_xor_b32', vr(P + 4), vr(P + 4), vr(P + 2))
            a('v_lshlrev_b32', vr(P + 4), '4', vr(P + 4))
            a('v_lshl_add_u32', vr(P + 4), vr(P), '6', vr(P + 4))
            a('v_lshl_add_u32', vr(P + 4), vr(P + 3), '3', vr(P + 4))
            a('v_lshl_add_u32', vr(P + 4), vr(P + 1), '11', vr(P + 4))
            a('v_add_u32', vr(P + 4), sr(sO3), vr(P + 4))
            a('v_xor_b32', vr(P + 5), '32', vr(P + 4))
            stride = 256
        F = acc(1, 1)
        ops.append(lambda: s.a.wait_tag('slice%d' % npass))
        for cp in range(2):
            for k in range(4):
                ks, q = k // 2, k % 2
                a('ds_read_b64_tr_b16', vr(F + (cp * 2 + ks) * 4 + 2 * q, 2), vr(P + 4 + cp), mods='offset:%d' % ((ks * 4 + q) * stride))
        ops += [None] * 6
        Da = vCs; Db = vCs + 4
        a(MF16, vr(Da, 4), vr(vSel, 4), vr(F, 4), '0')
        a(MF16, vr(Db, 4), vr(vSel, 4), vr(F + 8, 4), '0')
        a(MF16, vr(Da, 4), vr(vSel, 4), vr(F + 4, 4), vr(Da, 4))
        a(MF16, vr(Db, 4), vr(vSel, 4), vr(F + 12, 4), vr(Db, 4))
        ops += [None] * 8
        a('v_permlane16_swap_b32', vr(Da), vr(Da + 1))
        a('v_permlane16_swap_b32', vr(Db), vr(Db + 1))
        ops += [None] * 2
        a('v_permlane32_swap_b32', vr(Da), vr(Db))
        def st():
            aa = s.a
            aa('s_lshl_b32', sr(sF0), sr(sJ), '4')
            aa('s_add_u32', sr(sF0), sr(sF0), sr(sI))
            aa('s_mul_i32', sr(sF0), sr(sF0), '1280')
            aa('s_add_u32', sr(sF0), sr(sF0), hex(CSP_OFF))
            if npass == 1:
                aa('s_lshl_b32', sr(sF1), sr(sM), '8')
                aa('s_add_u32', sr(sF0), sr(sF0), sr(sF1))
            else:
                aa('s_add_u32', sr(sF0), sr(sF0), '1024')
                aa('s_cmp_eq_u32', sr(sM), '0')
                aa('s_cselect_b32', sr(sF0), sr(sF0), hex(OOB - 0x10000))
            aa('v_lshrrev_b32', vr(P), '2', vr(vL16))
            aa('buffer_store_dword', vr(Da), vr(P), sr(S_H, 4), sr(sF0), mods='offen sc1', tag='pub')
        ops.append(st)
        return ops

    def gather_loads(s):
        a = s.a
        T = vTA
        a('v_and_b32', vr(T + 4), '0x1f0', vr(vL16))
        a('v_lshrrev_b32', vr(T + 4), '1', vr(T + 4))
        a('s_lshl_b32', sr(sT1), sr(sI), '10')
        a('s_lshl_b32', sr(sT2), sr(sM), '8')
        a('s_add_u32', sr(sT1), sr(sT1), sr(sT2))
        a('s_add_u32', sr(sT1), sr(sT1), hex(STAT_OFF))
        a('buffer_load_dwordx2', vr(T, 2), vr(T + 4), sr(S_H, 4), sr(sT1), mods='offen sc1')
        a('v_lshrrev_b32', vr(T + 5), '2', vr(vL16))
        a('s_mul_i32', sr(sT1), sr(sJ), str(16 * 1280))
        a('s_add_u32', sr(sT1), sr(sT1), hex(CSP_OFF))
        a('s_mul_i32', sr(sT2), sr(sM), str(4 * 1280))
        a('s_add_u32', sr(sT2), sr(sT2), sr(sT1))
        a('s_add_u32', sr(sT2), sr(sT2), '1024')
        for i in range(3):
            a('buffer_load_dword', vr(vP + i), vr(T + 5), sr(S_H, 4), sr(sT2), mods='offen offset:%d sc1' % (i * 1280))
        a('s_add_u32', sr(sT2), sr(sT2), '3840')
        a('buffer_load_dword', vr(vP + 3), vr(T + 5), sr(S_H, 4), sr(sT2), mods='offen sc1')
        a('s_lshl_b32', sr(sT2), sr(sM), '8')
        a('s_add_u32', sr(sT1), sr(sT1), sr(sT2))
        for i in range(16):
            a('buffer_load_dword', vr(s.greg(i)), vr(T + 5), sr(S_H, 4), sr(sT1), mods='offen offset:%d sc1' % ((i % 3) * 1280))
            if i % 3 == 2: a('s_add_u32', sr(sT1), sr(sT1), str(3 * 1280))

    def gather_finish(s):
        ops = []
        o = lambda mn, *x, **k: ops.append(mkop(mn, *x, **k))
        T = vTA
        o('v_add_f32', vr(vP), vr(vP), vr(vP + 1)); o('v_add_f32', vr(vP + 2), vr(vP + 2), vr(vP + 3))
        o('v_add_f32', vr(vP), vr(vP), vr(vP + 2))
        o('s_lshl_b32', sr(sF0), sr(sM), '2')
        o('s_add_u32', sr(sF0), sr(sF0), hex(CT4))
        o('v_add_u32', vr(T + 6), sr(sF0), vr(vL16))
        o('ds_write_b32', vr(T + 6), vr(vP))
        g = s.greg
        for st in (1, 2, 4, 8):
            for i in range(0, 16, 2 * st): o('v_add_f32', vr(g(i)), vr(g(i)), vr(g(i + st)))
        o('s_lshl_b32', sr(sF0), sr(sM), '8')
        o('s_add_u32', sr(sF0), sr(sF0), hex(CTB))
        o('v_add_u32', vr(T + 6), sr(sF0), vr(T + 5))
        o('ds_write_b32', vr(T + 6), vr(g(0)))
        o('s_lshl_b32', sr(sF0), sr(sM), '8')
        o('s_add_u32', sr(sF0), sr(sF0), hex(STB))
        o('v_add_u32', vr(T + 6), sr(sF0), vr(T + 4))
        o('ds_write_b64', vr(T + 6), vr(T, 2))
        if s.typ == 'O':
            o('v_rcp_f32', vr(T + 2), vr(T + 1))
            o('v_lshrrev_b32', vr(T + 4), '1', vr(T + 4))
            o('s_lshl_b32', sr(sF0), sr(sM), '7')
            o('s_add_u32', sr(sF0), sr(sF0), hex(RSB))
            o('v_add_u32', vr(T + 4), sr(sF0), vr(T + 4))
            o('ds_write_b32', vr(T + 4), vr(T + 2))
        return ops

    def stats_consts(s):
        ops = []
        o = lambda mn, *x, **k: ops.append(mkop(mn, *x, **k))
        A = vTA
        o('v_and_b32', vr(A + 4), '0x1f0', vr(vL16))
        o('v_lshrrev_b32', vr(A + 4), '1', vr(A + 4))
        o('s_lshl_b32', sr(sF0), sr(sM), '8')
        o('s_add_u32', sr(sF0), sr(sF0), hex(STB))
        o('v_add_u32', vr(A + 4), sr(sF0), vr(A + 4))
        o('ds_read_b64', vr(A, 2), vr(A + 4))
        ops += [None] * 3
        o('v_sub_f32', vr(A + 2), '0', vr(A))
        o('v_cvt_pk_bf16_f32', vr(A + 2), vr(A + 2), vr(A + 2))
        o('v_cmp_gt_u32', 'vcc', '512', vr(vL16))
        o('v_mov_b32', vr(A + 3), '0')
        o('v_cndmask_b32', vr(vXE), vr(A + 3), vr(A + 2))
        o('v_rcp_f32', vr(A + 5), vr(A + 1))
        o('v_mul_f32', vr(vCC), vr(A + 1), vr(A + 1))
        o('v_mul_f32', vr(vK0), lit(K0), vr(A + 5))
        o('v_mul_f32', vr(A + 6), vr(A + 5), vr(A + 5))
        o('v_mul_f32', vr(A + 6), vr(A + 6), vr(A + 5))
        o('v_mul_f32', vr(vK1), lit(K1C), vr(A + 6))
        if s.typ == 'E': o('v_mov_b32', vr(vRS), vr(A + 5))
        return ops

    def ext_ops(s, r):
        ops = []
        o = lambda mn, *x, **k: ops.append(mkop(mn, *x, **k))
        segs = s.SEGS[s.typ][r]
        T = vT4
        for u, sg in enumerate(segs):
            if sg < 4:
                o('v_and_b32', vr(T), '0x1f0', vr(vL16))
                o('v_lshrrev_b32', vr(T), '2', vr(T))
                o('v_add_u32', vr(T), sr(sCT), vr(T))
                o('ds_read_b32', vr(T + 1), vr(T), mods='offset:%d' % (sg * 256))
                ops.extend([None] * 3)
            else:
                o('v_and_b32', vr(T), '0x1f0', vr(vL16))
                o('s_lshl_b32', sr(sF0), sr(sC), '9')
                o('v_add_u32', vr(T), sr(sF0), vr(T))
                o('v_add_u32', vr(T), hex(CT4), vr(T))
                o('ds_read_b128', vr(vP + 4, 4), vr(T))
                ops.extend([None] * 3)
                o('v_add_f32', vr(vP + 4), vr(vP + 4), vr(vP + 5)); o('v_add_f32', vr(vP + 6), vr(vP + 6), vr(vP + 7))
                o('v_add_f32', vr(T + 1), vr(vP + 4), vr(vP + 6))
            Q = T + 1
            o('v_cvt_pk_bf16_f32', vr(T + 3), vr(Q), vr(Q))
            o('v_lshlrev_b32', vr(T + 3), '16', vr(T + 3))
            o('v_sub_f32', vr(T + 3), vr(Q), vr(T + 3))
            o('v_cvt_pk_bf16_f32', vr(vWE), vr(Q), vr(T + 3))
            ops.append(None)
            Dd = acc(r % 2, u)
            if s.rounds[r] == 'KV': o(MF8, vr(Dd, 16), vr(vXE, 2), vr(vWE, 2), vr(Dd, 16))
            else: o(MF8, vr(Dd, 16), vr(vWE, 2), vr(vXE, 2), vr(Dd, 16))
        ops += [None] * 3
        return ops

    def kv_atomics(s):
        a = s.a
        t = acc(1, 1) if P('ORDO', 1) else acc(0, 1)
        a('s_lshl_b32', sr(sT1), sr(sM), '11')
        a('v_add_u32', vr(vTA), sr(sT1), vr(vL16))
        a('v_add_u32', vr(vTA), hex(KVL), vr(vTA))
        a('v_lshrrev_b32', vr(vTA + 1), '2', vr(vL16))
        for h in range(2):
            for m in range(4):
                a('ds_read_b128', vr(t + 4 * m, 4), vr(vTA), mods='offset:%d' % (m * 8192 + h * 1024))
            for i in range(4): a('v_add_f32', vr(t + i), vr(t + i), vr(t + 4 + i))
            for i in range(4): a('v_add_f32', vr(t + 8 + i), vr(t + 8 + i), vr(t + 12 + i))
            for i in range(4): a('v_add_f32', vr(t + i), vr(t + i), vr(t + 8 + i))
            a('s_lshl_b32', sr(sT1), sr(sM), '11')
            a('s_add_u32', sr(sT1), sr(sT1), sr(sAcc))
            for r in range(4):
                a('buffer_atomic_add_f32', vr(t + r), vr(vTA + 1), sr(S_H, 4), sr(sT1), mods='offen offset:%d' % (h * 1024 + r * 256), tag='kvat' if (r == 3 and h == 1) else None)

    def main(s):
        a = s.a; typ = s.typ; S = s.role == 'S'
        a.label('L_k1_' + s.name)
        a.nop(1)
        if S: s.setup_S()
        else: s.setup_D()
        a.stamp(2)
        steps = [(r, kk) for r in range(3) for kk in range(32)]
        issue_at = {}
        for n, (r, kk) in enumerate(steps):
            t = n - 2 if (s.pair(r) and kk >= 1) else n - 1
            issue_at.setdefault(t, []).append(n)
        bar_after = {}
        for n, (r, kk) in enumerate(steps):
            per = 8 if s.pair(r) else 4
            if kk % per == 0:
                t_issue = [t for t, l in issue_at.items() if n in l][0]
                bar_after.setdefault(t_issue - 1, []).append(s.wst[(r, kk // per)])
        def do_reads(t, u, units):
            for n in issue_at.get(t, []):
                r2, kk2 = steps[n]
                u2n = 1 if s.pair(r2) else 2
                if s.rounds[r2] == 'P2' and kk2 == 0 and u == 0:
                    tb = vP + 4 if r2 == 1 else vG
                    s.lq_bases('P2', [tb, tb + 1, tb + 2, tb + 3])
                if r2 > 0 and s.rounds[r2 - 1] == 'P2' and kk2 == 0 and u == 0:
                    s.lq_bases('Q', [vG, vG + 1, vG + 2, vG + 3])
                if units == 2 and u2n == 2:
                    s.wread(r2, kk2, only_u=u, xpart=(u == 0))
                elif u == units - 1:
                    s.wread(r2, kk2)
        cand = sorted(n for n in bar_after if n >= 32 + P('NSTAR', 5 if typ == 'E' else 10))
        s.nstar = cand[0]
        events = {}
        if S:
            sA = [(S_DBG, sArow, vTA + 6), (S_DBG, sAcol, vTA + 7)]
            def arrive():
                if 'chain' in EXP: a.lstamp(1)
                s.lead_spin('a', [(S_DBG, sArow, 1, vTA + 6), (S_DBG, sAcol, 1, vTA + 7)])
                s.signal([sRowCnt, sColCnt], vT4, vT4 + 1)
            def pre_done():
                if 'chain' in EXP: a.lstamp(0)
                a.stamp(45)
                s.lead_poll(sA)
                def nxt():
                    s.prebar.append(lambda: a.wait_tag('pub'))
                    s.postbar.append(arrive)
                s.postbar.append(nxt)
            if P('PLD', 1) == 0: s.pre_loads()
            else: s.postbar.append(s.pre_loads)
            s.postbar.append(lambda: s.prebar.append(s.late2))
            s.fq += [lambda: s.more_code_pf(3)]
            if P('SPF', 1): s.fq += [('UNTIL', P('SPF1', 3)), lambda: s.spf_phase(1)]
            s.fq += [('UNTIL', P('PRE0', 7))] + group_flags(s.row_stats_ops()) + group_flags(s.cs_slice_ops(1)) + group_flags(s.cs_slice_ops(2))
            s.fq.append(pre_done)
            if typ == 'O':
                s.prebar.append(lambda: a.wait_tag('zkv'))
                s.postbar.append(s.announce_kv)
            e1, e2, e3 = P('EV1', 24), P('EV2', 28), P('EV3', 31)
            events[divmod(e1, 32)] = lambda: s.lead_poll([(S_H, sRowCnt, vTA + 6), (S_H, sColCnt, vTA + 7)])
            events[divmod(e2, 32)] = lambda: (a.stamp(46), a.lstamp(2) if 'chain' in EXP else None, s.lead_spin('b', [(S_H, sRowCnt, 16, vTA + 6), (S_H, sColCnt, 16, vTA + 7)]), s.set_flag(vTA + 7, vTA + 6, 0), a.stamp(47), a.lstamp(3) if 'chain' in EXP else None)
            def do_gather():
                s.check_all('b', vTA + 7, vTA + 6, 0)
                s.gather_loads()
                s.fq[0:0] = [('UNTIL', s.cur + P('GD', 5))] + group_flags(s.gather_finish()) + [('MARK',)]
            events[divmod(e3, 32)] = do_gather
            if typ == 'E':
                events[(2, 14)] = lambda: s.lead_poll([(S_H, sDoneC, vTA + 7)])
                events[(2, 20)] = lambda: (s.lead_spin('d', [(S_H, sDoneC, 16, vTA + 7)]), s.set_flag(vTA + 7, vTA + 6, 1))
        if typ == 'E':
            events[(2, 30)] = lambda: (s.check_all('d', vTA + 7, vTA + 6, 1), s.o_loads())
        for st in bar_after.get(-2, []):
            s.bar(st); a.stamp(16); a.lstamp(0 if 'startup' not in EXP else 3) if 'chain' not in EXP else None
        do_reads(-1, 0, 1)
        for n, (r, kk) in enumerate(steps):
            rn = s.rounds[r]
            units = 1 if s.pair(r) else 2
            s.cur = n
            if (r, kk) in events and 'noev' not in EXP: events[(r, kk)]()
            setn = r % 2
            nf = s.fillrate(r, kk, units)
            for u in range(units):
                Dd = acc(setn, u)
                C = '0' if kk == 0 else vr(Dd, 16)
                wf = vr(s.wbuf(r, kk, u), 4)
                if rn == 'KV': a(MF, vr(Dd, 16), vr(xfr(kk), 4), wf, C)
                else: a(MF, vr(Dd, 16), wf, vr(xfr(kk), 4), C)
                do_reads(n, u, units)
                if r == 0 or u == units - 1:
                    if units == 2 or kk % 2 == 0 or len(s.dq) > 1: s.dma_half()
                s.fill(nf)
            s.nstep = n
            if n == s.nstar:
                assert n in bar_after
                if S and 'noev' not in EXP:
                    while not (isinstance(s.fq[0], tuple) and s.fq[0][0] == 'MARK'):
                        if isinstance(s.fq[0], tuple) and s.fq[0][0] == 'UNTIL': s.fq.pop(0)
                        else: s.fill(1)
                    s.fq.pop(0)
            for st in bar_after.get(n, []): s.bar(st)
            if kk == 31 and not (r == 0):
                s.flush()
                a.stamp(4 + r)
                if 'startup' not in EXP and 'chain' not in EXP: a.lstamp(1 + r)
                if r == 1 and typ == 'O': s._kv_after()
                s.push_epilogue(r)
            elif kk == 31:
                if 'startup' not in EXP and 'chain' not in EXP: a.lstamp(1)
                if 'chain' in EXP and not S: a.lstamp(3)
                s.push_epilogue(0)
        s.flush()
        a.stamp(7)
        if getattr(a, 'stamps', False): a.raw('  s_waitcnt vmcnt(0)')
        a.stamp(8)
        a.stamp(9, real=True)
        a.lstamp_collect(0)
        a.stamp_out(22, 's2', sr(sW), 0xA00000, vreg=0, tmpv=vT4, tmps=sT1)
        a.raw('  s_endpgm')

    def fill(s, n):
        k = 0
        while k < n and s.fq:
            op = s.fq[0]
            if isinstance(op, tuple):
                if op[0] == 'MARK': return
                if op[0] == 'UNTIL':
                    if s.cur < op[1]: return
                    s.fq.pop(0); continue
                if op[0] == 'G':
                    s.fq.pop(0)
                    for o2 in op[1]: s.a.emit(o2)
                    k += len(op[1]); continue
            s.fq.pop(0)
            if callable(op): op()
            elif op is None: k += 1
            else:
                if 'nofill' in EXP and s.cur >= 32 and op.kind in ('valu', 'trans'): continue
                s.a.emit(op); k += 1

    def flush(s):
        while s.fq:
            op = s.fq[0]
            if isinstance(op, tuple) and op[0] in ('UNTIL', 'MARK'):
                s.fq.pop(0); continue
            s.fill(1)

    def fillrate(s, r, kk, units):
        if r == 0: return P('F0', 12)
        if units == 1: return P('FP', 6)
        return P('FQ', 4)

    def push_epilogue(s, r):
        rn = s.rounds[r]; setn = r % 2
        a = s.a; q = s.fq; S = s.role == 'S'
        if r == 0:
            q.append(('UNTIL', s.nstar + 1))
            q += group_flags(s.stats_consts())
        q += s.ext_ops(r)
        if rn in ('GU0', 'GU1'):
            hreg = sHq if rn == 'GU0' else sHq2
            q += s.ep_geglu(acc(setn, 0), acc(setn, 1), 16, hreg, [0, 1024])
        elif rn == 'P2':
            q += s.ep_geglu(acc(setn, 0), acc(setn, 0) + 8, 8, sHq2, [0])
        elif rn == 'QP':
            q += s.phi_ops(acc(setn, 0), 16, lambda i: vRS)
            q += [x for x in s.o_ops() if not (isinstance(x, str) and x == 'GAP')]
        elif rn == 'KV':
            q += s.ep_kv(setn)

    def _kv_after(s):
        a = s.a; S = s.role == 'S'
        def after():
            if not S: return
            a('s_lshl_b32', sr(sW0b), sr(sP), '2')
            a('s_add_u32', sr(sW0b), sr(sW0b), '192')
            s.poll(S_DBG, sW0b, vTA + 7)
            def post1():
                s.all_spin('z' + s.role, S_DBG, sW0b, 1, vTA + 7)
                s.kv_atomics()
                def arm():
                    s.prebar.append(lambda: a.wait_tag('kvat'))
                    s.postbar.append(lambda: (a.stamp(13), s.signal([sDoneC], vTA + 3, vTA + 4)))
                s.postbar.append(arm)
            s.postbar.append(post1)
        after()
```

```python
from asmfw import *
from k1 import lit, LOG2E, H_BYTES, SLOT, P, EXP

D2 = 10
NST = 36
S_H, S_WD, S_WO, S_X, S_O = 24, 28, 32, 36, 40
sW, sRB, sCT, sA, sMa, sMb, sBo = 48, 49, 50, 51, 52, 53, 54
sT0, sT1, sT2, sT3 = 60, 61, 62, 63
vLane = 1
vA = 2
vB = 5
vO = 8
vT = 10
vXr = 32
vF = 40
vAcc1 = 72
vAcc2 = 88

def k2_gen(stamps=False):
    a = Asm()
    a.stamps = stamps
    a.raw('  s_cmp_ge_u32 s2, 256')
    a.raw('  s_cbranch_scc1 L_k2_exit')
    if stamps:
        a.raw('  s_memtime s[96:97]')
        a.raw('  s_memrealtime s[98:99]')
    a.raw('  s_load_dwordx16 s[4:19], s[0:1], 0')
    a.raw('  s_load_dwordx4 s[20:23], s[0:1], 64')
    a('v_and_b32', vr(vLane), '63', 'v0')
    a('v_lshrrev_b32', vr(vT), '6', 'v0')
    a('v_readfirstlane_b32', sr(sW), vr(vT))
    a('s_and_b32', sr(sT0), 's2', '7')
    a('s_lshr_b32', sr(sT1), 's2', '3')
    if P('K2MAP', 0) == 0:
        a('s_lshr_b32', sr(sT2), sr(sT0), '1')
        a('s_and_b32', sr(sT3), sr(sT0), '1')
        a('s_lshl_b32', sr(sRB), sr(sT2), '3')
        a('s_and_b32', sr(sT2), sr(sT1), '7')
        a('s_add_u32', sr(sRB), sr(sRB), sr(sT2))
        a('s_lshl_b32', sr(sCT), sr(sT3), '2')
        a('s_lshr_b32', sr(sT1), sr(sT1), '3')
        a('s_add_u32', sr(sCT), sr(sCT), sr(sT1))
    else:
        a('s_lshl_b32', sr(sRB), sr(sT0), '2')
        a('s_and_b32', sr(sT2), sr(sT1), '3')
        a('s_add_u32', sr(sRB), sr(sRB), sr(sT2))
        a('s_lshr_b32', sr(sCT), sr(sT1), '2')
    a('s_cmp_ge_u32', sr(sW), '4')
    a.raw('  s_cbranch_scc1 L_k2_loader'); a.pos += 1
    ld = a.fork()

    def srd(x, d, lo, size):
        x('s_mov_b32', sr(d), sr(lo)); x('s_mov_b32', sr(d + 1), sr(lo + 1))
        x('s_mov_b32', sr(d + 2), hex(size)); x('s_mov_b32', sr(d + 3), '0x20000')

    t = vT
    a('s_and_b32', sr(sT0), sr(sW), '1')
    a('s_lshr_b32', sr(sT1), sr(sW), '1')
    a('v_lshlrev_b32', vr(vA), '4', vr(vLane))
    a('s_lshl_b32', sr(sT2), sr(sT0), '12')
    a('v_add_u32', vr(vA), sr(sT2), vr(vA))
    a('v_add_u32', vr(vA + 1), '0x10000', vr(vA))
    a('v_add_u32', vr(vA + 2), '0x20000', vr(vA))
    a('v_lshrrev_b32', vr(t), '5', vr(vLane))
    a('v_lshlrev_b32', vr(t), '2', vr(t))
    a('v_bfe_u32', vr(t + 1), vr(vLane), '2', '2')
    a('v_add_u32', vr(t), vr(t), vr(t + 1))
    a('v_bfe_u32', vr(t + 2), vr(vLane), '4', '1')
    a('v_bfe_u32', vr(t + 3), vr(vLane), '1', '1')
    a('v_and_b32', vr(t + 4), '1', vr(vLane))
    a('v_lshlrev_b32', vr(t + 4), '3', vr(t + 4))
    a('v_lshl_add_u32', vr(t + 5), vr(t + 2), '1', vr(t + 3))
    a('s_lshl_b32', sr(sT2), sr(sT1), '2')
    a('v_add_u32', vr(t + 5), sr(sT2), vr(t + 5))
    a('v_bfe_u32', vr(t + 6), vr(vLane), '3', '1')
    a('v_lshlrev_b32', vr(t + 6), '2', vr(t + 6))
    a('v_xor_b32', vr(t + 5), vr(t + 5), vr(t + 6))
    a('v_lshlrev_b32', vr(t + 5), '4', vr(t + 5))
    a('v_lshl_add_u32', vr(vB), vr(t), '7', vr(t + 5))
    a('v_add_u32', vr(vB), vr(vB), vr(t + 4))
    a('v_add_u32', vr(vB), '0x2000', vr(vB))
    a('v_add_u32', vr(vB + 1), '0x10000', vr(vB))
    a('v_add_u32', vr(vB + 2), '0x20000', vr(vB))
    a('s_lshl_b32', sr(sT2), sr(sRB), '6')
    a('s_lshl_b32', sr(sT3), sr(sT0), '5')
    a('s_add_u32', sr(sT2), sr(sT2), sr(sT3))
    a('v_and_b32', vr(t), '31', vr(vLane))
    a('v_add_u32', vr(t), sr(sT2), vr(t))
    a('v_lshlrev_b32', vr(vO), '10', vr(t))
    a('s_lshl_b32', sr(sT2), sr(sCT), '7')
    a('s_lshl_b32', sr(sT3), sr(sT1), '6')
    a('s_add_u32', sr(sT2), sr(sT2), sr(sT3))
    a('v_lshrrev_b32', vr(t), '5', vr(vLane))
    a('v_lshlrev_b32', vr(t), '3', vr(t))
    a('v_add_u32', vr(t), sr(sT2), vr(t))
    a('v_add_u32', vr(vO), vr(vO), vr(t))
    a.raw('  s_waitcnt lgkmcnt(0)'); a.pos += 1
    srd(a, S_X, 4, 2048 * 1024)
    srd(a, S_O, 18, 2048 * 1024)
    for g in range(4):
        a('buffer_load_dwordx2', vr(vXr + 2 * g, 2), vr(vO), sr(S_X, 4), '0', mods='offen offset:%d' % (g * 16))
    if stamps:
        a.raw('  v_writelane_b32 v0, s96, 0')
        a.raw('  v_writelane_b32 v0, s98, 1')
    a.stamp(2)
    nsteps = NST * 4
    stage_reads = {}
    freed_at = []
    freed = 0
    def reads(n):
        st, q = n // 4, n % 4
        so = (st % D2) * SLOT
        win, so = so >> 16, so & 0xffff
        f = vF + (n % 4) * 8
        a('ds_read_b128', vr(f, 4), vr(vA + win), mods='offset:%d' % (so + q * 1024))
        stage_reads.setdefault(st, []).append(a.lg_issued - 1)
        for qq in range(2):
            a('ds_read_b64_tr_b16', vr(f + 4 + 2 * qq, 2), vr(vB + win), mods='offset:%d' % (so + q * 2048 + qq * 1024))
            stage_reads[st].append(a.lg_issued - 1)
    def bar(st):
        nonlocal freed
        while freed < st and len(stage_reads.get(freed, [])) == 12 and all(i < a.lg_retired for i in stage_reads[freed]):
            freed += 1
        a.barrier()
        if st in (0, 1, 2, 4, 8, 16, 24, 28, 35): a.stamp(16 + st)
        freed_at.append(freed)
    DIST = 2
    for n in range(-DIST, nsteps):
        m = n + DIST
        if m < nsteps:
            if m % 4 == 0: bar(m // 4)
            reads(m)
        if n >= 0:
            f = vF + (n % 4) * 8
            Dd = vAcc1 if n < 112 else vAcc2
            C = '0' if n in (0, 112) else vr(Dd, 16)
            a('v_mfma_f32_32x32x16_bf16', vr(Dd, 16), vr(f + 4, 4), vr(f, 4), C)
    a.stamp(3)
    T = vT
    for b in range(4):
        r = [4 * b + i for i in range(4)]
        for i in range(4): a('v_mul_f32', vr(T + i), lit(-LOG2E), vr(vAcc1 + r[i]))
        for i in range(4): a('v_exp_f32', vr(T + i), vr(T + i))
        for i in range(4): a('v_mul_f32', vr(vAcc2 + r[i]), vr(vAcc2 + r[i]), vr(vAcc1 + r[i]))
        for i in range(4): a('v_add_f32', vr(T + i), '1.0', vr(T + i))
        for i in range(4): a('v_rcp_f32', vr(T + i), vr(T + i))
        a('v_lshlrev_b32', vr(T + 4), '16', vr(vXr + 2 * b))
        a('v_and_b32', vr(T + 5), '0xffff0000', vr(vXr + 2 * b))
        a('v_lshlrev_b32', vr(T + 6), '16', vr(vXr + 2 * b + 1))
        a('v_and_b32', vr(T + 7), '0xffff0000', vr(vXr + 2 * b + 1))
        for i in range(4): a('v_fma_f32', vr(T + 4 + i), vr(vAcc2 + r[i]), vr(T + i), vr(T + 4 + i))
        a('v_cvt_pk_bf16_f32', vr(T + 8 + 2 * b), vr(T + 4), vr(T + 5))
        a('v_cvt_pk_bf16_f32', vr(T + 9 + 2 * b), vr(T + 6), vr(T + 7))
        a('buffer_store_dwordx2', vr(T + 8 + 2 * b, 2), vr(vO), sr(S_O, 4), '0', mods='offen offset:%d%s' % (b * 16, {0: '', 1: ' sc1', 2: ' nt', 3: ' sc0 sc1'}[P('K2ST', 0)]))
    a.stamp(7)
    if stamps:
        a.raw('  s_waitcnt vmcnt(0)')
    a.stamp(8)
    a.stamp(9, real=True)
    a.stamp_out(22, 's2', sr(sW), 0xB00000)
    a.raw('  s_endpgm')

    l = ld
    l.label('L_k2_loader')
    l.nop(2)
    t = vT
    l('s_sub_u32', sr(sW), sr(sW), '4')
    l('s_and_b32', sr(sT0), sr(sW), '1')
    l('s_lshr_b32', sr(sT1), sr(sW), '1')
    l('s_lshl_b32', sr(sT2), sr(sRB), '1')
    l('s_add_u32', sr(sT2), sr(sT2), sr(sT0))
    l('s_mul_i32', sr(sT2), sr(sT2), '144')
    l('s_lshl_b32', sr(sT3), sr(sT1), '1')
    l('s_add_u32', sr(sT2), sr(sT2), sr(sT3))
    l('s_lshl_b32', sr(sA), sr(sT2), '10')
    l('s_lshl_b32', sr(sT2), sr(sT0), '2')
    l('s_add_u32', sr(sT2), sr(sT2), sr(sT3))
    l('s_lshl_b32', sr(sMa), sr(sT2), '10')
    l('s_lshl_b32', sr(sMb), sr(sW), '11')
    l('s_add_u32', sr(sMb), sr(sMb), '8192')
    l('s_lshl_b32', sr(sBo), sr(sCT), '7')
    l('v_lshlrev_b32', vr(vA), '4', vr(vLane))
    l('v_lshrrev_b32', vr(t), '3', vr(vLane))
    l('s_lshl_b32', sr(sT2), sr(sW), '4')
    l('v_add_u32', vr(t), sr(sT2), vr(t))
    l('v_lshlrev_b32', vr(t), '10', vr(t))
    l('v_and_b32', vr(t + 1), '7', vr(vLane))
    l('v_lshrrev_b32', vr(t + 2), '2', vr(vLane))
    l('v_and_b32', vr(t + 2), '4', vr(t + 2))
    l('v_xor_b32', vr(t + 1), vr(t + 1), vr(t + 2))
    l('v_lshl_add_u32', vr(vB), vr(t + 1), '4', vr(t))
    l.raw('  s_waitcnt lgkmcnt(0)'); l.pos += 1
    srd(l, S_H, 22, H_BYTES)
    srd(l, S_WD, 16, 1792 * 1024)
    srd(l, S_WO, 8, 512 * 1024)
    def dma(st):
        base = (st % D2) * SLOT
        for e in range(2):
            l('s_add_u32', 'm0', sr(sMb), str(base + e * 1024))
            if st < 28:
                l('s_add_u32', sr(sT0), sr(sBo), str(st * 65536 + e * 8192))
                l('buffer_load_dwordx4', vr(vB), sr(S_WD, 4), sr(sT0), mods='offen lds')
            else:
                l('s_add_u32', sr(sT0), sr(sBo), str((st - 28) * 65536 + e * 8192))
                l('buffer_load_dwordx4', vr(vB), sr(S_WO, 4), sr(sT0), mods='offen lds')
        for e in range(2):
            l('s_add_u32', 'm0', sr(sMa), str(base + e * 1024))
            l('s_add_u32', sr(sT0), sr(sA), str(st * 4096 + e * 1024))
            l('buffer_load_dwordx4', vr(vA), sr(S_H, 4), sr(sT0), mods='offen lds', tag=('dma', st) if e == 1 else None)
    if stamps:
        l.raw('  v_writelane_b32 v0, s96, 0')
        l.raw('  v_writelane_b32 v0, s98, 1')
    l.stamp(2)
    issued = 0
    AH = P('K2AH', 4)
    while issued < P('K2INIT', 3):
        dma(issued); issued += 1
        if issued in (1, 2): l.stamp(2 + issued)
    l.stamp(10)
    for st in range(NST):
        l.wait_tag(('dma', st))
        if st in (0, 1, 2, 3, 4, 8): l.stamp(16 + st)
        l.barrier()
        k = 0
        while issued < NST and issued - D2 < freed_at[st] and issued - (st + 1) < AH and k < 2:
            dma(issued); issued += 1; k += 1
    l.stamp(9, real=True)
    l.stamp_out(22, 's2', sr(sW), 0xB00000 + 1024)
    l.raw('  s_endpgm')
    return a, l
```

```python
import sys
from asmfw import *
import k1, k2, k1b, os

def kd(name, vg, sg):
    return f""".section .rodata,"a"
.p2align 6
.amdhsa_kernel {name}
  .amdhsa_next_free_vgpr {vg}
  .amdhsa_next_free_sgpr {sg}
  .amdhsa_accum_offset {vg}
  .amdhsa_group_segment_fixed_size 0
  .amdhsa_kernarg_size 80
  .amdhsa_user_sgpr_count 2
  .amdhsa_user_sgpr_kernarg_segment_ptr 1
  .amdhsa_system_sgpr_workgroup_id_x 1
.end_amdhsa_kernel
"""

HEADER = """; Fused LN + linear-attention + GEGLU FFN block for gfx950 (generated by gen/gen.py; hand-designed schedule)
; k1: LayerNorm + QKV/gate/up GEMM + GEGLU + kv reduction + normalised attention rows -> ws fragments
; k2: [h | o] x [w_down ; wo] dual GEMM + silu gate + residual
; @launch kernel=k1_kernel grid=(256,1,1) block=(512,1,1) lds=163840
; @launch kernel=k2_kernel grid=(256,1,1) block=(512,1,1) lds=163840
.amdgcn_target "amdgcn-amd-amdhsa--gfx950"
.text
"""

def main(out, stamps=False):
    a = Asm()
    a.stamps = stamps
    a.lstamps = 'lstamps' in sys.argv
    if os.environ.get('ROLES', '1') == '1':
        k1b.prologue(a)
        paths = []
        for typ, role in (('E', 'D'), ('E', 'S'), ('O', 'D'), ('O', 'S')):
            p = a.fork(); k1b.K1R(typ, role, p).main(); paths.append(p)
        c, l = k2.k2_gen(stamps)
        txt = HEADER
        if os.environ.get('ONLY') == 'k1':
            txt = txt.replace('; @launch kernel=k2_kernel grid=(256,1,1) block=(512,1,1) lds=163840\n', '')
        txt += ".globl k1_kernel\n.p2align 8\n.type k1_kernel,@function\nk1_kernel:\n"
        txt += a.text() + ''.join(p.text() for p in paths) + "L_k1_exit:\n  s_endpgm\n"
        txt += ".globl k2_kernel\n.p2align 8\n.type k2_kernel,@function\nk2_kernel:\n"
        txt += c.text() + l.text() + "L_k2_exit:\n  s_endpgm\n"
        txt += ".fill 64, 4, 0xBF800000\n"
        txt += kd('k1_kernel', 256, 102) + kd('k2_kernel', 128, 102)
        open(out, 'w').write(txt)
        print('insts: prologue %d paths %s nops %s' % (a.ninst, [p.ninst - a.ninst for p in paths], [p.nops for p in paths]), file=sys.stderr)
        return
    k1.k1_prologue(a, 24576)
    e = a.fork(); o = a.fork()
    e.label('L_k1_E'); e.nop(1)
    k1.K1('E', e).main()
    o.label('L_k1_O'); o.nop(1)
    k1.K1('O', o).main()
    c, l = k2.k2_gen(stamps)

    txt = HEADER
    if os.environ.get('ONLY') == 'k1':
        txt = txt.replace('; @launch kernel=k2_kernel grid=(256,1,1) block=(512,1,1) lds=163840\n', '')
    if os.environ.get('ONLY') == 'k2':
        txt = txt.replace('; @launch kernel=k1_kernel grid=(256,1,1) block=(512,1,1) lds=163840\n', '')
    txt += ".globl k1_kernel\n.p2align 8\n.type k1_kernel,@function\nk1_kernel:\n"
    txt += a.text() + e.text() + o.text() + "L_k1_exit:\n  s_endpgm\n"
    txt += ".globl k2_kernel\n.p2align 8\n.type k2_kernel,@function\nk2_kernel:\n"
    txt += c.text() + l.text() + "L_k2_exit:\n  s_endpgm\n"
    txt += ".fill 64, 4, 0xBF800000\n"
    txt += kd('k1_kernel', 256, 102) + kd('k2_kernel', 128, 102)
    open(out, 'w').write(txt)
    print('insts: prologue %d E %d O %d | k2 cons %d load %d ; nops: E %d O %d c %d l %d' % (a.ninst, e.ninst - a.ninst, o.ninst - a.ninst, c.ninst, l.ninst, e.nops, o.nops, c.nops, l.nops), file=sys.stderr)

main(sys.argv[1] if len(sys.argv) > 1 else 'out.s', stamps=('stamps' in sys.argv))
```

```python
from asmfw import *
import struct, os
EXP = os.environ.get('EXP', '').split(',')
def P(name, default):
    return int(os.environ.get(name, default))

def f2u(x):
    return struct.unpack('<I', struct.pack('<f', x))[0]
def lit(x):
    return '0x%08x' % f2u(x)

LOG2E = 1.4426950408889634
K0 = -2.0 * 0.7978845608028654 * LOG2E
K1C = K0 * 0.044715

SLOT = 16384
H_BYTES = 64 * 144 * 1024
ACC_OFF = H_BYTES
STAT_OFF = 0x910000
CSP_OFF = 0x914000
ARENA = 0x970000
WS_BYTES = 0x980000
D = 8
D2 = 6
AHEAD = P('AHEAD', 4)
KVL = D2 * SLOT
CTB = KVL + 32768
DUMMY = CTB + 2048
RSB = DUMMY + 2048
FLG = RSB + 512
CSB = 139264
SUMB = CSB + 4096
SQB = SUMB + 1024
DUMMYL = SQB + 2048
LOCAL = P('LOCAL', 0)
FUSE = P('FUSE', 0)
SCR = 139264
OOB = 0x7ffffff0
MF = 'v_mfma_f32_32x32x16_bf16'
MF8 = 'v_mfma_f32_32x32x8_bf16'
MF16 = 'v_mfma_f32_16x16x32_bf16'

S_X, S_Q, S_G, S_U, S_H, S_DBG = 24, 28, 32, 36, 40, 44
sW, sM, sC, sI, sP = 48, 49, 50, 51, 52
sXoff = 53; sM0 = 54; sM0b = 55; sFo = 56; sFo2 = 57; sQo = 58; sHb = 59
sT0, sT1, sT2, sT3 = 60, 61, 62, 63
sMask = 64
sHq = 66; sHq2 = 67
S_T0 = 68; S_T1 = 72
S_WD, S_WO = 68, 72
sHo = 76; sSlot = 77; sB = 78; sTyp = 79
sPC = 80
sScr = 10
sW0a, sW0b = 11, 18
sRotE = 3
sCs, sCsw, sOwn, sMk2 = 4, 5, 6, 98
sRot, sRotP = 12, 13
sO0, sO1, sO2, sO3 = 4, 5, 6, 7
sSpin = 82; sJ = 83
sAcc = 84; sAccC = 85; sRowCnt = 86; sColCnt = 87; sDoneC = 88
sPollA = 89; sPollB = 90; sArow = 91; sAcol = 92; sT4 = 93; sT5 = 94; sCT = 95
sF0, sF1, sF2, sF3, sF4 = 3, 98, 99, 100, 101
sT6 = 99; sT7 = 100; sT8 = 101

vSt = 0
vStE = 47
vL16 = 1; vK1 = 2; vK0 = 3; vCC = 4; vRS = 5
vOnes = 5
vLq = 6
vDa, vDb, vDc, vDd = 8, 9, 10, 11
vTA = 12
vP = 20
vT4 = 28
vG = 32
vSel = 32
vCs = 36
vXE = 44
vWE = 46
vW = 48; vAcc = 64; vX = 128
vXa = 20

def acc(setn, unit): return vAcc + setn * 32 + unit * 16
def xfr(kk): return vX + kk * 4

def rot_off(a, rotreg, t, mul, base, imm=0):
    a('s_add_u32', sr(sT0), sr(rotreg), str(t))
    a('s_and_b32', sr(sT0), sr(sT0), '7')
    a('s_mul_i32', sr(sT0), sr(sT0), str(mul))
    a('s_add_u32', sr(sT0), sr(sT0), sr(base))
    if imm: a('s_add_u32', sr(sT0), sr(sT0), str(imm))

def x_dma(a, t, idx):
    base = (idx % D) * SLOT
    for e in range(2):
        a('s_add_u32', 'm0', sr(sM0b), str(base + e * 1024))
        rot_off(a, sRotE if t == 0 and idx == 0 else sRot, t, 128, sXoff)
        a('buffer_load_dwordx4', vr(vDc + e), sr(S_X, 4), sr(sT0), mods='offen lds', tag=('dma', idx) if e == 1 else None)

def srd(a, d, lo, size):
    a('s_mov_b32', sr(d), sr(lo)); a('s_mov_b32', sr(d + 1), sr(lo + 1))
    a('s_mov_b32', sr(d + 2), hex(size)); a('s_mov_b32', sr(d + 3), '0x20000')

def k1_prologue(a, code_bytes):
    a.raw('  s_cmp_ge_u32 s2, 256')
    a.raw('  s_cbranch_scc1 L_k1_exit')
    if P('FLP', 1):
        a.raw('  s_getpc_b64 s[%d:%d]' % (sPC, sPC + 1))
        a.raw('  s_bfe_u32 s3, s2, 0x20003')
        a.raw('  s_lshl_b32 s3, s3, 13')
        a.raw('  v_lshl_add_u32 v%d, v0, 4, s3' % (vX + 127))
        a.raw('  global_load_dwordx4 v[%d:%d], v%d, s[%d:%d]' % (vX + 108, vX + 111, vX + 127, sPC, sPC + 1))
        a.vm_issued += 1
        a.pend['v%d' % (vX + 108)] = ('vm', a.vm_issued - 1); a.pend['v%d' % (vX + 109)] = ('vm', a.vm_issued - 1)
        a.pend['v%d' % (vX + 110)] = ('vm', a.vm_issued - 1); a.pend['v%d' % (vX + 111)] = ('vm', a.vm_issued - 1)
    if getattr(a, 'stamps', False):
        a.raw('  s_memtime s[96:97]')
        a.raw('  s_memrealtime s[98:99]')
    a.raw('  s_load_dwordx16 s[4:19], s[0:1], 0')
    a.raw('  s_load_dwordx4 s[20:23], s[0:1], 64')
    a.raw('  s_getpc_b64 s[%d:%d]' % (sPC, sPC + 1))
    a.label('L_k1_pc')
    L = vTA
    t = vP
    a('v_lshlrev_b32', vr(vP + 7), '4', 'v0')
    a('v_and_b32', vr(L), '63', 'v0')
    a('v_lshrrev_b32', vr(t), '6', 'v0')
    a('v_lshlrev_b32', vr(vL16), '4', vr(L))
    a('v_readfirstlane_b32', sr(sW), vr(t))
    a('s_and_b32', sr(sT0), 's2', '7')
    a('s_lshr_b32', sr(sSlot), 's2', '3')
    a('s_lshr_b32', sr(sT1), sr(sT0), '1')
    a('s_and_b32', sr(sB), sr(sT0), '1')
    a('s_lshr_b32', sr(sT2), sr(sSlot), '2')
    a('s_lshl_b32', sr(sT3), sr(sB), '3')
    a('s_add_u32', sr(sT2), sr(sT2), sr(sT3))
    a('s_mov_b32', sr(sJ), sr(sT2))
    a('s_and_b32', sr(sTyp), sr(sT2), '1')
    a('s_cmp_eq_u32', sr(sTyp), '0')
    a.raw('  s_mov_b32 s%d, L_k1_E-L_k1_pc' % sT3); a.pos += 1
    a.raw('  s_mov_b32 s%d, L_k1_O-L_k1_pc' % sT4); a.pos += 1
    a('s_cselect_b32', sr(sT3), sr(sT3), sr(sT4))
    a('s_add_u32', sr(sPC), sr(sPC), sr(sT3))
    a('s_addc_u32', sr(sPC + 1), sr(sPC + 1), '0')
    a('s_lshr_b32', sr(sP), sr(sT2), '1')
    a('s_lshl_b32', sr(sI), sr(sT1), '2')
    a('s_and_b32', sr(sT2), sr(sSlot), '3')
    a('s_add_u32', sr(sI), sr(sI), sr(sT2))
    a('s_and_b32', sr(sM), sr(sW), '3')
    a('s_lshr_b32', sr(sC), sr(sW), '2')
    a('s_and_b32', sr(sT0), sr(sI), '3')
    a('s_lshl_b32', sr(sT0), sr(sT0), '1')
    a('s_add_u32', sr(sRotE), sr(sT0), sr(sJ))
    a('s_and_b32', sr(sRotE), sr(sRotE), '7' if P('ROT', 0) else '0')
    a('s_lshl_b32', sr(sXoff), sr(sI), '17')
    a('s_lshl_b32', sr(sM0), sr(sW), '10')
    a('s_lshl_b32', sr(sM0b), sr(sW), '11')
    a('s_lshl_b32', sr(sQo), sr(sP), '7')
    a('v_lshrrev_b32', vr(t), '3', vr(L))
    a('s_lshl_b32', sr(sT0), sr(sW), '4')
    a('v_add_u32', vr(t + 5), sr(sT0), vr(t))
    a('v_lshlrev_b32', vr(t + 3), '10', vr(t + 5))
    a('v_and_b32', vr(t + 1), '7', vr(L))
    a('v_lshrrev_b32', vr(t + 2), '4', vr(L))
    a('v_xor_b32', vr(t + 2), vr(t + 1), vr(t + 2))
    a('v_lshl_add_u32', vr(vDc), vr(t + 2), '4', vr(t + 3))
    a('v_xor_b32', vr(vDd), '64', vr(vDc))
    a('v_add_u32', vr(vDd), '0x2000', vr(vDd))
    a('v_lshrrev_b32', vr(t + 2), '2', vr(L))
    a('v_and_b32', vr(t + 2), '4', vr(t + 2))
    a('v_xor_b32', vr(t + 1), vr(t + 1), vr(t + 2))
    a('v_lshlrev_b32', vr(t + 1), '4', vr(t + 1))
    a('s_lshl_b32', sr(sT0), sr(sW), '3')
    a('v_add_u32', vr(t + 3), sr(sT0), vr(t))
    a('v_mul_u32_u24', vr(vDa), '3584', vr(t + 3))
    a('v_add_u32', vr(vDa), vr(vDa), vr(t + 1))
    a('s_lshl_b32', sr(sT0), sr(sM), '4')
    a('v_add_u32', vr(t + 5), sr(sT0), vr(t))
    a('s_cmp_eq_u32', sr(sTyp), '0')
    a('s_cselect_b64', 'vcc', '-1', '0')
    a('v_cndmask_b32', vr(t + 3), vr(t + 3), vr(t + 5))
    a('v_mul_u32_u24', vr(vDb), '3072', vr(t + 3))
    a('v_add_u32', vr(vDb), vr(vDb), vr(t + 1))
    a('s_mul_i32', sr(sT0), sr(sP), '224')
    a('s_and_b32', sr(sT1), sr(sP), '1')
    a('s_lshl_b32', sr(sT1), sr(sT1), '1')
    a('s_add_u32', sr(sT1), sr(sT1), sr(sTyp))
    a('s_mov_b32', sr(sT2), '0'); a('s_mov_b32', sr(sT3), '64')
    a('s_cmp_eq_u32', sr(sT1), '1'); a('s_cselect_b32', sr(sT2), '128', sr(sT2)); a('s_cselect_b32', sr(sT3), '192', sr(sT3))
    a('s_cmp_eq_u32', sr(sT1), '2'); a('s_cselect_b32', sr(sT2), '96', sr(sT2)); a('s_cselect_b32', sr(sT3), '160', sr(sT3))
    a('s_cmp_eq_u32', sr(sT1), '3'); a('s_cselect_b32', sr(sT2), '32', sr(sT2)); a('s_cselect_b32', sr(sT3), '0', sr(sT3))
    a('s_add_u32', sr(sT2), sr(sT2), sr(sT0))
    a('s_add_u32', sr(sT3), sr(sT3), sr(sT0))
    a('s_lshl_b32', sr(sFo), sr(sT2), '1')
    a('s_lshl_b32', sr(sFo2), sr(sT3), '1')
    if not P('FLP', 1): a('global_load_dwordx4', vr(vX + 112, 4), vr(vP + 7), sr(sPC, 2))
    a.raw('  s_waitcnt lgkmcnt(0)')
    a.pos += 1
    srd(a, S_X, 4, 2048 * 1024)
    if not P('EARLYPRE', 1): x_dma(a, 0, 0)
    if getattr(a, 'stamps', False):
        a.raw('  v_writelane_b32 v%d, s96, 0' % vStE)
        a.raw('  v_writelane_b32 v%d, s98, 1' % vStE)
    srd(a, S_Q, 6, 512 * 3072)
    srd(a, S_G, 12, 512 * 3584)
    srd(a, S_U, 14, 512 * 3584)
    a('s_mov_b32', sr(sRot), sr(sRotE))
    a('s_add_u32', sr(sRotP), sr(sRotE), sr(sC))
    a('s_cmp_eq_u32', sr(sTyp), '0')
    a.raw('  s_cbranch_scc0 L_k1_O'); a.pos += 1

def group_flags(ops):
    out = []
    i = 0
    while i < len(ops):
        op = ops[i]
        if isinstance(op, Op) and (op.text.startswith('s_cmp') or (op.text.startswith('v_cmp') and 'vcc' in op.wr)):
            flag = 'scc' if op.text.startswith('s_cmp') else 'vcc'
            j = i + 1; last = i
            while j < len(ops) and isinstance(ops[j], Op):
                o2 = ops[j]
                if flag in o2.rd: last = j
                if flag in o2.wr and flag == 'vcc': break
                if flag == 'scc' and o2.kind == 'salu' and not o2.text.startswith('s_cselect') and not o2.text.startswith('s_mov'): break
                j += 1
                if j - i > 8: break
            out.append(('G', ops[i:last + 1]))
            i = last + 1
        else:
            out.append(op); i += 1
    return out

class K1:
    def __init__(s, typ, a):
        s.a = a; s.typ = typ
        s.fq = []
        s.freed = 0
        s.issued = 0 if P('EARLYPRE', 1) else 1
        s.landed = 0
        s.stage_reads = {}
        s.stage_done = set()
        s.prebar = []; s.postbar = []
        s.rounds = ['GU0', 'GU1', 'QP'] if typ == 'E' else (['KV', 'P2', 'GU0'] if P('ORDO', 1) else ['KV', 'GU0', 'P2'])
        s.stages = []
        s.wst = {}; s.xst = {}
        for t in range(8):
            s.xst[t] = len(s.stages); s.stages.append(('X', t))
            s.wst[(0, t)] = len(s.stages); s.stages.append((s.rounds[0], t))
        for r in (1, 2):
            n = 4 if s.rounds[r] in ('QP', 'P2') else 8
            for t in range(n):
                s.wst[(r, t)] = len(s.stages); s.stages.append((s.rounds[r], t))
        s.nlab = 0
        s.ool = []
        s.cur = -1
        s.ool = []
        s.p2ready = False
        s.dq = []; s.dqh = 0
        s.slot = {}; s.occ = [None] * D
        if not P('EARLYPRE', 1): s.slot = {0: 0}; s.occ[0] = 0

    def pair(s, r): return s.rounds[r] in ('QP', 'P2')

    def dma(s, idx, only=None):
        a = s.a
        kind, t = s.stages[idx]
        base = s.slot[idx] * SLOT
        tag = ('dma', idx)
        lst = []
        def one(m0reg, m0imm, voff, srd_, off, tg=None):
            lst.append((m0reg, m0imm, voff, srd_, off, tg))
        if kind == 'X':
            one(sM0b, 0, vDc, S_X, (sRot, t, 128, sXoff, 0))
            one(sM0b, 1024, vDd, S_X, (sRot, t, 128, sXoff, 0), tag)
        elif kind in ('GU0', 'GU1'):
            fo = sFo if kind == 'GU0' else sFo2
            one(sM0, 0, vDa, S_G, (sRot, t, 64 * 3584, fo, 0))
            one(sM0, 8192, vDa, S_U, (sRot, t, 64 * 3584, fo, 0), tag)
        elif kind == 'KV':
            one(sM0, 0, vDb, S_Q, (sRot, t, 64 * 3072, sQo, 1024))
            one(sM0, 8192, vDb, S_Q, (sRot, t, 64 * 3072, sQo, 2048), tag)
        elif kind == 'QP':
            one(sM0b, 0, vDb, S_Q, (sRotP, 2 * t, 64 * 3072, sQo, 0))
            one(sM0b, 1024, vDb, S_Q, (sRotP, 2 * t, 64 * 3072, sQo, 8 * 3072), tag)
        elif kind == 'P2':
            if not s.p2ready:
                s.p2_voffs()
            one(sM0, 0, vDc, S_G, (sRotP, 2 * t, 64 * 3584, sFo2, 0))
            one(sM0, 8192, vDd, S_U, (sRotP, 2 * t, 64 * 3584, sFo2, 0), tag)
        else:
            raise ValueError
        for j, (m0reg, m0imm, voff, srd_, off, tg) in enumerate(lst):
            if only is not None and j != only: continue
            if 'nodma' in EXP and idx > 3:
                if tg is not None: a.tags[tg] = ('vm', -1)
                continue
            a('s_add_u32', 'm0', sr(m0reg), str(base + m0imm))
            rot_off(a, off[0], off[1], off[2], off[3], off[4])
            a('buffer_load_dwordx4', vr(voff), sr(srd_, 4), sr(sT0), mods='offen lds', tag=tg)

    def p2_voffs(s):
        a = s.a
        assert all(k != 'X' for k, _ in s.stages[s.issued:])
        a('v_lshrrev_b32', vr(vDc), '6', vr(vL16))
        a('s_lshl_b32', sr(sT0), sr(sM), '4')
        a('v_add_u32', vr(vDc), sr(sT0), vr(vDc))
        a('v_mul_u32_u24', vr(vDc), '3584', vr(vDc))
        a('v_and_b32', vr(vDd), '48', vr(vL16))
        a('v_add_u32', vr(vDc), vr(vDc), vr(vDd))
        a('v_xor_b32', vr(vDd), '32', vr(vDc))
        s.p2ready = True

    def alloc(s, idx):
        n = D if idx < 16 else D2
        for k in range(n):
            j = (s.lastslot + 1 + k) % n if hasattr(s, 'lastslot') else k
            if s.occ[j] is None or s.occ[j] < s.freed:
                s.occ[j] = idx; s.slot[idx] = j; s.lastslot = j
                return True
        return False

    def issue_more(s, now=False):
        while s.issued < len(s.stages) and s.issued - s.landed < AHEAD and s.alloc(s.issued):
            if now:
                s.dma(s.issued)
            else:
                s.dq.append(s.issued)
            s.issued += 1

    def dma_half(s):
        if not s.dq: return
        idx = s.dq[0]
        h = s.dqh
        s.dma(idx, only=h)
        if h == 1:
            s.dq.pop(0); s.dqh = 0
        else:
            s.dqh = 1

    def dma_flush(s, upto):
        while s.dq and s.dq[0] <= upto:
            s.dma_half()

    def bar(s, idx):
        a = s.a
        if idx is not None:
            s.dma_flush(idx)
        if idx is not None and 'nowait' not in EXP:
            a.wait_tag(('dma', idx))
        pb, s.prebar = s.prebar, []
        for f in pb: f()
        a.need([('lg', a.last_dsw)]) if a.last_dsw >= 0 else None
        nfree = s.freed
        while nfree < len(s.stages) and nfree in s.stage_done and all(i < a.lg_retired for i in s.stage_reads.get(nfree, [])):
            nfree += 1
        if 'nobar' not in EXP: a.barrier()
        s.freed = nfree
        if idx is not None: s.landed = idx + 1
        s.issue_more()
        if s.fq and isinstance(s.fq[0], str) and s.fq[0] == 'WAITBAR': s.fq.pop(0)
        pb, s.postbar = s.postbar, []
        for f in pb: f()

    def fill(s, n):
        k = 0
        if 'nofill' in EXP:
            s.fq = [x for x in s.fq if callable(x) or isinstance(x, str)]
        while k < n and s.fq:
            op = s.fq[0]
            if isinstance(op, str) and op == 'WAITBAR':
                return
            if isinstance(op, tuple) and op[0] == 'UNTIL':
                if s.cur < op[1]: return
                s.fq.pop(0); continue
            if isinstance(op, tuple) and op[0] == 'G':
                s.fq.pop(0)
                for o2 in op[1]: s.a.emit(o2)
                k += len(op[1]); continue
            s.fq.pop(0)
            if callable(op): op()
            elif op is None: k += 1
            else:
                s.a.emit(op); k += 1
    def flush(s):
        while s.fq:
            if isinstance(s.fq[0], str) and s.fq[0] == 'WAITBAR':
                s.bar(None)
                continue
            if isinstance(s.fq[0], tuple) and s.fq[0][0] == 'UNTIL':
                s.fq.pop(0); continue
            s.fill(1)

    def w0_spin(s, name, checks):
        a = s.a
        if 'nospin' in EXP:
            for (_, _, _, v) in checks: a('v_readfirstlane_b32', sr(sT2), vr(v))
            return
        regs = [sT2, sT3]
        for k, (_, _, _, v) in enumerate(checks): a('v_readfirstlane_b32', sr(regs[k]), vr(v))
        L = 'L_%s%s' % (name, s.typ)
        a('s_cmp_eq_u32', sr(sW), '0')
        a.raw('  s_cbranch_scc0 %s_ok' % L)
        a.raw('  s_mov_b32 %s, 0' % sr(sSpin))
        a.label(L + '_chk')
        for k, (_, _, tgt, _) in enumerate(checks):
            a.raw('  s_cmp_ge_u32 %s, %d' % (sr(regs[k]), tgt))
            a.raw('  s_cbranch_scc0 %s_spin' % L)
        a.raw('  s_branch %s_ok' % L)
        a.label(L + '_spin')
        a.raw('  s_sleep 8')
        for k, (srd_, soff, _, v) in enumerate(checks):
            a.raw('  buffer_load_dword %s, off, %s, %s sc1' % (vr(v), sr(srd_, 4), sr(soff)))
        a.raw('  s_waitcnt vmcnt(0)')
        for k, (_, _, _, v) in enumerate(checks):
            a.raw('  v_readfirstlane_b32 %s, %s' % (sr(regs[k]), vr(v)))
        a.raw('  s_add_u32 %s, %s, 1' % (sr(sSpin), sr(sSpin)))
        a.raw('  s_cmp_lt_u32 %s, 0x100000' % sr(sSpin))
        a.raw('  s_cbranch_scc1 %s_chk' % L)
        a.label(L + '_ok')
        a.pos += 3
        a.nop(2)

    def all_spin(s, name, srd_, soff, target, vreg):
        a = s.a
        a('v_readfirstlane_b32', sr(sT2), vr(vreg))
        if 'nospin' in EXP: return
        L = 'L_%s%s' % (name, s.typ)
        a('s_cmp_ge_u32', sr(sT2), str(target))
        a.raw('  s_cbranch_scc1 %s_ok' % L)
        a.raw('  s_mov_b32 %s, 0' % sr(sSpin))
        a.label(L + '_spin')
        a.raw('  s_sleep 16')
        a.raw('  buffer_load_dword %s, off, %s, %s sc1' % (vr(vreg), sr(srd_, 4), sr(soff)))
        a.raw('  s_waitcnt vmcnt(0)')
        a.raw('  v_readfirstlane_b32 %s, %s' % (sr(sT2), vr(vreg)))
        a.raw('  s_add_u32 %s, %s, 1' % (sr(sSpin), sr(sSpin)))
        a.raw('  s_cmp_ge_u32 %s, 0x100000' % sr(sSpin))
        a.raw('  s_cbranch_scc1 %s_ok' % L)
        a.raw('  s_cmp_ge_u32 %s, %d' % (sr(sT2), target))
        a.raw('  s_cbranch_scc0 %s_spin' % L)
        a.label(L + '_ok')
        a.pos += 2
        a.nop(2)

    def set_flag(s, vreg, vtmp, flagidx):
        a = s.a
        a('s_cmp_eq_u32', sr(sW), '0')
        a('s_mov_b32', sr(sT3), hex(DUMMY))
        a('s_cselect_b32', sr(sT3), hex(FLG + 4 * flagidx), sr(sT3))
        a('v_mov_b32', vr(vtmp), sr(sT3))
        a('v_mov_b32', vr(vreg), '1')
        a('ds_write_b32', vr(vtmp), vr(vreg))

    def check_all(s, name, vreg, vtmp, flagidx):
        a = s.a
        a('v_mov_b32', vr(vtmp), hex(FLG + 4 * flagidx))
        a('ds_read_b32', vr(vreg), vr(vtmp))
        a('v_readfirstlane_b32', sr(sT2), vr(vreg))
        if 'nospin' in EXP: return
        L = 'L_%s%s' % (name, s.typ)
        a('s_cmp_lg_u32', sr(sT2), '0')
        a.raw('  s_cbranch_scc1 %s_ok2' % L)
        a.raw('  s_mov_b32 %s, 0' % sr(sSpin))
        a.label(L + '_lds')
        a.raw('  s_sleep 1')
        a.raw('  ds_read_b32 %s, %s' % (vr(vreg), vr(vtmp)))
        a.raw('  s_waitcnt lgkmcnt(0)')
        a.raw('  v_readfirstlane_b32 %s, %s' % (sr(sT2), vr(vreg)))
        a.raw('  s_add_u32 %s, %s, 1' % (sr(sSpin), sr(sSpin)))
        a.raw('  s_cmp_ge_u32 %s, 0x1000000' % sr(sSpin))
        a.raw('  s_cbranch_scc1 %s_ok2' % L)
        a.raw('  s_cmp_eq_u32 %s, 0' % sr(sT2))
        a.raw('  s_cbranch_scc1 %s_lds' % L)
        a.label(L + '_ok2')
        a.pos += 2
        a.nop(2)

    def poll(s, srd_, soff, vreg):
        op = Op('buffer_load_dword %s, off, %s, %s sc1' % (vr(vreg), sr(srd_, 4), sr(soff)), 'vm_load',
                regs_of(sr(srd_, 4)) + [sr(soff)], [vr(vreg)])
        s.a.emit(op)

    def tid0(s, t0, t1):
        a = s.a
        a('v_add_u32', vr(t0), sr(sM0), vr(vL16))
        a('v_mov_b32', vr(t1), hex(OOB))
        a('v_cmp_ne_u32', 'vcc', '0', vr(t0))
        a('v_cndmask_b32', vr(t0), vr(t0), vr(t1))
        a('v_mov_b32', vr(t1), '1')

    def signal(s, soffs, t0, t1):
        a = s.a
        s.tid0(t0, t1)
        for so in soffs:
            a('buffer_atomic_add', vr(t1), vr(t0), sr(S_H, 4), sr(so), mods='offen')

    def ep_geglu(s, g, u, nval, hreg, imms):
        ops = []
        o = lambda mn, *x, **k: ops.append(mkop(mn, *x, **k))
        T = vT4
        for fr in range(nval // 8):
            P = vP + 4 * fr
            for b in range(2):
                idx = [fr * 8 + b * 4 + i for i in range(4)]
                for i, r in enumerate(idx): o('v_mul_f32', vr(T + i), vr(g + r), vr(g + r))
                for i, r in enumerate(idx): o('v_fma_f32', vr(T + i), vr(T + i), vr(vK1), vr(vK0))
                for i, r in enumerate(idx): o('v_mul_f32', vr(T + i), vr(g + r), vr(T + i))
                for i, r in enumerate(idx): o('v_exp_f32', vr(T + i), vr(T + i))
                for i, r in enumerate(idx): o('v_mul_f32', vr(u + r), vr(g + r), vr(u + r))
                for i, r in enumerate(idx): o('v_fma_f32', vr(T + i), vr(T + i), vr(vCC), vr(vCC))
                for i, r in enumerate(idx): o('v_rcp_f32', vr(T + i), vr(T + i))
                for i, r in enumerate(idx): o('v_mul_f32', vr(u + r), vr(u + r), vr(T + i))
                o('v_cvt_pk_bf16_f32', vr(P + 2 * b), vr(u + idx[0]), vr(u + idx[1]))
                o('v_cvt_pk_bf16_f32', vr(P + 2 * b + 1), vr(u + idx[2]), vr(u + idx[3]))
            o('s_add_u32', sr(sT1), sr(hreg), str(imms[fr]))
            if 'nost' not in EXP: o('buffer_store_dwordx4', vr(P, 4), vr(vL16), sr(S_H, 4), sr(sT1), mods='offen sc1' if 'plainst' not in EXP else 'offen')
        return ops

    def phi_ops(s, a0, n, scale):
        ops = []
        o = lambda mn, *x, **k: ops.append(mkop(mn, *x, **k))
        T = vT4
        for b in range(n // 4):
            r = [a0 + 4 * b + i for i in range(4)]
            for i in range(4): o('v_mul_f32', vr(r[i]), vr(r[i]), vr(scale(4 * b + i)))
            o('v_cvt_pk_bf16_f32', vr(T + 0), vr(r[0]), vr(r[1]))
            o('v_cvt_pk_bf16_f32', vr(T + 1), vr(r[2]), vr(r[3]))
            o('v_lshlrev_b32', vr(r[0]), '16', vr(T + 0))
            o('v_and_b32', vr(r[1]), '0xffff0000', vr(T + 0))
            o('v_lshlrev_b32', vr(r[2]), '16', vr(T + 1))
            o('v_and_b32', vr(r[3]), '0xffff0000', vr(T + 1))
            for i in range(4): o('v_min_f32', vr(T + i), '0', vr(r[i]))
            for i in range(4): o('v_mul_f32', vr(T + i), lit(LOG2E), vr(T + i))
            for i in range(4): o('v_exp_f32', vr(T + i), vr(T + i))
            for i in range(4): o('v_max_f32', vr(r[i]), '0', vr(r[i]))
            for i in range(4): o('v_add_f32', vr(T + i), lit(1e-6), vr(T + i))
            for i in range(4): o('v_add_f32', vr(r[i]), vr(r[i]), vr(T + i))
            o('v_cvt_pk_bf16_f32', vr(a0 + 2 * b), vr(r[0]), vr(r[1]))
            o('v_cvt_pk_bf16_f32', vr(a0 + 2 * b + 1), vr(r[2]), vr(r[3]))
        return ops

    def ep_kv(s, setn):
        ops = []
        o = lambda mn, *x, **k: ops.append(mkop(mn, *x, **k))
        k = acc(setn, 0); v = acc(setn, 1)
        PV = vTA; DD = vTA
        RSR = vTA
        T = vT4
        o('v_lshrrev_b32', vr(T), '9', vr(vL16))
        o('v_lshlrev_b32', vr(T), '4', vr(T))
        o('s_lshl_b32', sr(sT1), sr(sM), '7')
        o('v_add_u32', vr(T), sr(sT1), vr(T))
        o('v_add_u32', vr(T), hex(RSB), vr(T))
        for g in range(4): o('ds_read_b128', vr(RSR + 4 * g, 4), vr(T), mods='offset:%d' % (g * 32))
        for i in range(16): o('v_mul_f32', vr(v + i), vr(v + i), vr(RSR + i))
        ops += s.phi_ops(k, 16, lambda i: RSR + i)
        for i in range(8): o('v_cvt_pk_bf16_f32', vr(PV + i), vr(v + 2 * i), vr(v + 2 * i + 1))
        for i in range(8): o('v_cndmask_b32', vr(v + i), vr(vOnes), vr(PV + i), sr(sMask, 2))
        for i in range(8): o('v_cndmask_b32', vr(v + 8 + i), vr(PV + i), vr(vOnes), sr(sMask, 2))
        o('s_lshl_b32', sr(sT1), sr(sM), '13')
        o('s_lshl_b32', sr(sT2), sr(sC), '12'); o('s_add_u32', sr(sT1), sr(sT1), sr(sT2))
        o('s_add_u32', sr(sT1), sr(sT1), hex(KVL))
        o('v_add_u32', vr(T), sr(sT1), vr(vL16))
        o(MF, vr(DD, 16), vr(k, 4), vr(v, 4), '0')
        o(MF, vr(DD, 16), vr(k + 4, 4), vr(v + 4, 4), vr(DD, 16))
        ops += [None] * 10
        o('ds_write_b128', vr(T), vr(DD, 4), mods='offset:0')
        o('ds_write_b128', vr(T), vr(DD + 4, 4), mods='offset:1024')
        ops += [None]
        o(MF, vr(DD, 16), vr(k, 4), vr(v + 8, 4), '0')
        o(MF, vr(DD, 16), vr(k + 4, 4), vr(v + 12, 4), vr(DD, 16))
        ops += [None] * 10
        o('ds_write_b128', vr(T), vr(DD + 8, 4), mods='offset:2048')
        o('ds_write_b128', vr(T), vr(DD + 12, 4), mods='offset:3072')
        return ops

    def wbuf(s, r, kk, u):
        if s.pair(r):
            return vW + (kk % 4) * 4
        return vW + (kk % 2) * 8 + u * 4

    def wread(s, rnd, kk, only_u=None, xpart=True):
        a = s.a
        rn = s.rounds[rnd]
        per = 8 if s.pair(rnd) else 4
        st = s.wst[(rnd, kk // per)]
        so = s.slot[st] * SLOT
        win, so = so >> 16, so & 0xffff
        kq = kk % per
        units = 1 if s.pair(rnd) else 2
        if rnd == 0 and xpart:
            xs = s.xst[kk // 4]
            xo = s.slot[xs] * SLOT
            xw, xo = xo >> 16, xo & 0xffff
            a('ds_read_b128', vr(xfr(kk), 4), vr(vP + 4 * xw + kq), mods='offset:%d' % xo)
            s.stage_reads.setdefault(xs, []).append(a.lg_issued - 1)
            if kq == 3: s.stage_done.add(xs)
        for u in range(units):
            if only_u is not None and u != only_u: continue
            for q in range(2):
                if rn == 'P2':
                    off = so + kq * 1024 + q * 256
                else:
                    off = so + u * 8192 + kq * 2048 + q * 512
                a('ds_read_b64_tr_b16', vr(s.wbuf(rnd, kk, u) + 2 * q, 2), vr(vLq + win), mods='offset:%d' % off)
                s.stage_reads.setdefault(st, []).append(a.lg_issued - 1)
        if kq == per - 1 and (only_u is None or only_u == units - 1):
            s.stage_done.add(st)

    def lq_bases(s, pattern, tt):
        a = s.a
        t0, t1, t2, t3 = tt
        a('v_lshrrev_b32', vr(t0), '9', vr(vL16))
        a('v_lshlrev_b32', vr(t0), '3', vr(t0))
        a('v_bfe_u32', vr(t1), vr(vL16), '6', '2')
        a('v_add_u32', vr(t0), vr(t0), vr(t1))
        a('v_bfe_u32', vr(t1), vr(vL16), '8', '1')
        a('v_bfe_u32', vr(t2), vr(vL16), '5', '1')
        if pattern == 'Q':
            a('v_lshl_add_u32', vr(t2), vr(t1), '1', vr(t2))
            a('s_lshl_b32', sr(sT0), sr(sC), '2')
            a('v_add_u32', vr(t2), sr(sT0), vr(t2))
            a('v_bfe_u32', vr(t3), vr(vL16), '7', '1')
            a('v_lshlrev_b32', vr(t3), '2', vr(t3))
            a('v_xor_b32', vr(t2), vr(t2), vr(t3))
            a('v_lshlrev_b32', vr(t2), '4', vr(t2))
            a('v_lshl_add_u32', vr(vLq), vr(t0), '7', vr(t2))
        else:
            a('s_lshl_b32', sr(sT0), sr(sC), '1')
            a('v_add_u32', vr(t2), sr(sT0), vr(t2))
            a('v_lshlrev_b32', vr(t3), '1', vr(t1))
            a('v_xor_b32', vr(t2), vr(t2), vr(t3))
            a('v_lshlrev_b32', vr(t2), '4', vr(t2))
            a('v_lshl_add_u32', vr(vLq), vr(t0), '6', vr(t2))
            a('v_lshlrev_b32', vr(t3), '13', vr(t1))
            a('v_add_u32', vr(vLq), vr(vLq), vr(t3))
        a('v_bfe_u32', vr(t3), vr(vL16), '4', '1')
        a('v_lshl_add_u32', vr(vLq), vr(t3), '3', vr(vLq))
        a('v_add_u32', vr(vLq + 1), '0x10000', vr(vLq))

    def setup(s):
        a = s.a; typ = s.typ
        if not P('EARLYPRE', 1):
            return s.setup_late()
        srd(a, S_H, 22, WS_BYTES)
        a('s_lshl_b32', sr(sRowCnt), sr(sI), '8')
        a('s_add_u32', sr(sRowCnt), sr(sRowCnt), hex(ARENA))
        a('s_lshl_b32', sr(sColCnt), sr(sJ), '8')
        a('s_add_u32', sr(sColCnt), sr(sColCnt), hex(ARENA + 16 * 256))
        a('s_lshl_b32', sr(sDoneC), sr(sP), '8')
        a('s_add_u32', sr(sDoneC), sr(sDoneC), hex(ARENA + 32 * 256))
        a('s_lshl_b32', sr(sAcc), sr(sP), '13')
        a('s_add_u32', sr(sAcc), sr(sAcc), hex(ACC_OFF))
        Z = vT4
        for i in range(4): a('v_mov_b32', vr(Z + i), '0')
        a('v_mov_b32', vr(vTA + 5), hex(OOB))
        a('v_cmp_eq_u32', 'vcc', '0', 'v0')
        a('v_cndmask_b32', vr(vTA + 4), vr(vTA + 5), vr(Z))
        if getattr(a, 'stamps', False):
            a('v_mov_b32', 'v0', vr(vStE))
        a('v_mov_b32', vr(vXE + 1), '0'); a('v_mov_b32', vr(vWE + 1), '0')
        a('s_mov_b32', sr(sT4), hex(OOB))
        a('s_cmp_eq_u32', sr(sJ), '0')
        a('s_cselect_b32', sr(sT0), sr(sRowCnt), sr(sT4))
        a('buffer_store_dword', vr(Z), vr(vTA + 4), sr(S_H, 4), sr(sT0), mods='offen sc1')
        a('s_cmp_eq_u32', sr(sI), '0')
        a('s_cselect_b32', sr(sT0), sr(sColCnt), sr(sT4))
        a('s_cselect_b32', sr(sT1), sr(sDoneC), sr(sT4))
        a('s_cselect_b32', sr(sT2), sr(sAcc), sr(sT4))
        a('buffer_store_dword', vr(Z), vr(vTA + 4), sr(S_H, 4), sr(sT0), mods='offen sc1', tag='zrc')
        if typ == 'O':
            a('buffer_store_dword', vr(Z), vr(vTA + 4), sr(S_H, 4), sr(sT1), mods='offen sc1')
            a('s_min_u32', sr(sT3), sr(sT2), hex(OOB - 0x10000))
            a('s_add_u32', sr(sT3), sr(sT3), sr(sM0))
            a('buffer_store_dwordx4', vr(Z, 4), vr(vL16), sr(S_H, 4), sr(sT3), mods='offen sc1', tag='zkv')
        LL = s.late_loads()
        LL[0]()
        t = vTA
        a('s_min_u32', sr(sT6), sr(sW), '4')
        if typ == 'E':
            cands = [(S_G, sFo, 0), (S_U, sFo, 0), (S_Q, sQo, 0), (S_G, sFo2, 0), (S_U, sFo2, 0)]
        else:
            cands = [(S_Q, sQo, 1024), (S_Q, sQo, 2048), (S_G, sFo, 0), (S_U, sFo, 0), (S_G, sFo2, 0)]
        for k in range(3): a('s_mov_b32', sr(S_T0 + k), sr(cands[0][0] + k))
        a('s_add_u32', sr(sT7), sr(cands[0][1]), str(cands[0][2]))
        a('s_mov_b32', sr(sT8), '3584' if cands[0][0] != S_Q else '3072')
        for sg in range(1, 5):
            c = cands[sg]
            a('s_add_u32', sr(sT1), sr(c[1]), str(c[2]))
            a('s_cmp_eq_u32', sr(sT6), str(sg))
            for k in range(3): a('s_cselect_b32', sr(S_T0 + k), sr(c[0] + k), sr(S_T0 + k))
            a('s_cselect_b32', sr(sT7), sr(sT1), sr(sT7))
            a('s_cselect_b32', sr(sT8), '3072' if c[0] == S_Q else '3584', sr(sT8))
        a('s_mov_b32', sr(S_T0 + 3), '0x20000')
        for k in range(3): a('s_mov_b32', sr(S_T1 + k), sr(S_T0 + k))
        a('s_mov_b32', sr(S_T1 + 3), '0x20000')
        a('v_lshrrev_b32', vr(t), '7', vr(vL16))
        a('v_mul_lo_u32', vr(t), vr(t), sr(sT8))
        a('v_bfe_u32', vr(t + 1), vr(vL16), '4', '3')
        a('v_bfe_u32', vr(t + 2), vr(vL16), '8', '1')
        a('v_lshlrev_b32', vr(t + 2), '2', vr(t + 2))
        a('v_xor_b32', vr(t + 1), vr(t + 1), vr(t + 2))
        a('v_lshl_add_u32', vr(t), vr(t + 1), '4', vr(t))
        a('v_mov_b32', vr(t + 1), vr(t))
        a('s_lshl_b32', sr(sT0), sr(sI), '5')
        a('s_mul_i32', sr(sT0), sr(sT0), sr(sT8))
        a('s_add_u32', sr(sT7), sr(sT7), sr(sT0))
        a('s_lshl_b32', sr(sT1), sr(sT8), '3')
        a('s_lshl_b32', sr(sT2), sr(sT8), '4')
        a('s_add_u32', sr(sT3), sr(sT1), sr(sT2))
        if typ == 'O':
            a('s_cmp_eq_u32', sr(sC), '1')
            for k in range(3): a('s_cselect_b32', sr(S_T1 + k), sr(S_U + k), sr(S_T1 + k))
            a('s_cselect_b32', sr(sT1), '57344', sr(sT1))
            a('s_cselect_b32', sr(sT2), '0', sr(sT2))
            a('s_cselect_b32', sr(sT3), '57344', sr(sT3))
            a('v_lshrrev_b32', vr(t + 2), '6', vr(vL16))
            a('v_mul_u32_u24', vr(t + 2), '3584', vr(t + 2))
            a('v_and_b32', vr(t + 3), '48', vr(vL16))
            a('v_add_u32', vr(t + 2), vr(t + 2), vr(t + 3))
            a('v_xor_b32', vr(t + 3), '32', vr(t + 2))
            a('s_cselect_b64', 'vcc', '-1', '0')
            a('v_cndmask_b32', vr(t), vr(t), vr(t + 2))
            a('v_cndmask_b32', vr(t + 1), vr(t + 1), vr(t + 3))
        a('s_min_u32', sr(sT4), sr(sW), '5')
        a('s_lshl_b32', sr(sT4), sr(sT4), '12')
        a('s_add_u32', sr(sScr), sr(sT4), hex(SCR))
        a('s_cmp_ge_u32', sr(sW), '5')
        a('s_cselect_b32', sr(S_T0 + 2), '0', sr(S_T0 + 2))
        a('s_cselect_b32', sr(S_T1 + 2), '0', sr(S_T1 + 2))
        a('s_add_u32', sr(sO1), sr(sT7), sr(sT1))
        a('s_add_u32', sr(sO2), sr(sT7), sr(sT2))
        a('s_add_u32', sr(sO3), sr(sT7), sr(sT3))
        a('s_mov_b32', sr(sO0), sr(sT7))
        for f in LL[1:5]: f()
        global AHEAD
        save = AHEAD; AHEAD = 2
        s.issue_more(now=True)
        AHEAD = save
        a.stamp(41)
        srd(a, S_DBG, 20, 256)
        a('s_lshl_b32', sr(sT0), sr(sI), '2')
        a('s_add_u32', sr(sT0), sr(sT0), sr(sM))
        a('s_mul_i32', sr(sHb), sr(sT0), str(144 * 1024))
        a('s_mov_b32', sr(sMask), '0xffff'); a('s_mov_b32', sr(sMask + 1), '0xffff')
        a('s_lshl_b32', sr(sT0), sr(sC), '12')
        a('s_add_u32', sr(sAccC), sr(sAcc), sr(sT0))
        a('s_lshl_b32', sr(sArow), sr(sI), '2')
        a('s_lshl_b32', sr(sAcol), sr(sJ), '2')
        a('s_add_u32', sr(sAcol), sr(sAcol), '128')
        a('s_lshl_b32', sr(sT0), sr(sC), '7')
        a('s_add_u32', sr(sCT), sr(sT0), hex(CTB))
        a('s_lshl_b32', sr(sT0), sr(sFo), '5')
        a('s_add_u32', sr(sHq), sr(sHb), sr(sT0))
        a('s_lshl_b32', sr(sT1), sr(sC), '11')
        a('s_add_u32', sr(sHq), sr(sHq), sr(sT1))
        a('s_lshl_b32', sr(sT0), sr(sFo2), '5')
        a('s_add_u32', sr(sHq2), sr(sHb), sr(sT0))
        if typ == 'E':
            a('s_add_u32', sr(sHq2), sr(sHq2), sr(sT1))
            a('s_lshl_b32', sr(sT0), sr(sP), '12')
            a('s_add_u32', sr(sHo), sr(sHb), sr(sT0))
            a('s_add_u32', sr(sHo), sr(sHo), sr(sT1))
            a('s_add_u32', sr(sHo), sr(sHo), str(112 * 1024))
        else:
            a('s_lshl_b32', sr(sT1), sr(sC), '10')
            a('s_add_u32', sr(sHq2), sr(sHq2), sr(sT1))
            a('v_mov_b32', vr(vOnes), '0x3f803f80')
        T = vT4
        a('v_mov_b32', vr(T), hex(FLG))
        a('v_mov_b32', vr(T + 2), '0'); a('v_mov_b32', vr(T + 3), '0')
        a('ds_write_b64', vr(T), vr(T + 2, 2))
        a('ds_write_b32', vr(T), vr(T + 2), mods='offset:8')
        s.lq_bases('Q', [vT4, vT4 + 1, vT4 + 2, vT4 + 3])
        t = vT4
        a('v_bfe_u32', vr(t), vr(vL16), '4', '5')
        a('s_lshl_b32', sr(sT0), sr(sM), '5')
        a('v_add_u32', vr(t + 1), sr(sT0), vr(t))
        a('v_lshlrev_b32', vr(t + 1), '7', vr(t + 1))
        a('v_bfe_u32', vr(t + 2), vr(vL16), '5', '3')
        a('v_lshrrev_b32', vr(t + 3), '9', vr(vL16))
        a('v_xor_b32', vr(t + 2), vr(t + 2), vr(t + 3))
        for kq in range(4):
            a('v_xor_b32', vr(t + 3), str(2 * kq), vr(t + 2))
            a('v_lshl_add_u32', vr(vP + kq), vr(t + 3), '4', vr(t + 1))
            a('v_add_u32', vr(vP + 4 + kq), '0x10000', vr(vP + kq))
        LL[5]()
        a.stamp(42)
        s.issue_more(now=True)
        a.stamp(43)
        a.wait_tag('zrc')
        T = vT4
        s.tid0(T, T + 1)
        a('s_mov_b32', sr(sT1), hex(OOB))
        a('s_cmp_eq_u32', sr(sJ), '0')
        a('s_cselect_b32', sr(sT0), sr(sArow), sr(sT1))
        a('buffer_store_dword', vr(T + 1), vr(T), sr(S_DBG, 4), sr(sT0), mods='offen sc1')
        a('s_cmp_eq_u32', sr(sI), '0')
        a('s_cselect_b32', sr(sT0), sr(sAcol), sr(sT1))
        a('buffer_store_dword', vr(T + 1), vr(T), sr(S_DBG, 4), sr(sT0), mods='offen sc1')
        a.stamp(44)
        for op in s.row_stats_ops() + s.cs_slice_ops():
            if callable(op): op()
            elif op is not None: a.emit(op)
        a.stamp(45)

    def setup_late(s):
        a = s.a; typ = s.typ
        global AHEAD
        save = AHEAD; AHEAD = 2
        s.issue_more(now=True)
        AHEAD = save
        if P('SPF', 1): s.sparse_pf(0)
        srd(a, S_H, 22, WS_BYTES)
        a('s_lshl_b32', sr(sRowCnt), sr(sI), '8')
        a('s_add_u32', sr(sRowCnt), sr(sRowCnt), hex(ARENA))
        a('s_lshl_b32', sr(sColCnt), sr(sJ), '8')
        a('s_add_u32', sr(sColCnt), sr(sColCnt), hex(ARENA + 16 * 256))
        a('s_lshl_b32', sr(sDoneC), sr(sP), '8')
        a('s_add_u32', sr(sDoneC), sr(sDoneC), hex(ARENA + 32 * 256))
        a('s_lshl_b32', sr(sAcc), sr(sP), '13')
        a('s_add_u32', sr(sAcc), sr(sAcc), hex(ACC_OFF))
        Z = vT4
        for i in range(4): a('v_mov_b32', vr(Z + i), '0')
        a('v_mov_b32', vr(vTA + 5), hex(OOB))
        a('v_cmp_eq_u32', 'vcc', '0', 'v0')
        a('v_cndmask_b32', vr(vTA + 4), vr(vTA + 5), vr(Z))
        if getattr(a, 'stamps', False):
            a('v_mov_b32', 'v0', vr(vStE))
        a('v_mov_b32', vr(vXE + 1), '0'); a('v_mov_b32', vr(vWE + 1), '0')
        a('s_mov_b32', sr(sT4), hex(OOB))
        if not LOCAL or FUSE:
            a('s_cmp_eq_u32', sr(sJ), '0')
            a('s_cselect_b32', sr(sT0), sr(sRowCnt), sr(sT4))
            a('buffer_store_dword', vr(Z), vr(vTA + 4), sr(S_H, 4), sr(sT0), mods='offen sc1', tag='zrow')
        a('s_cmp_eq_u32', sr(sI), '0')
        a('s_cselect_b32', sr(sT0), sr(sColCnt), sr(sT4))
        a('s_cselect_b32', sr(sT1), sr(sDoneC), sr(sT4))
        a('s_cselect_b32', sr(sT2), sr(sAcc), sr(sT4))
        if not LOCAL: a('buffer_store_dword', vr(Z), vr(vTA + 4), sr(S_H, 4), sr(sT0), mods='offen sc1', tag='zrc')
        if typ == 'O':
            a('buffer_store_dword', vr(Z), vr(vTA + 4), sr(S_H, 4), sr(sT1), mods='offen sc1')
            a('s_min_u32', sr(sT3), sr(sT2), hex(OOB - 0x10000))
            a('s_add_u32', sr(sT3), sr(sT3), sr(sM0))
            a('buffer_store_dwordx4', vr(Z, 4), vr(vL16), sr(S_H, 4), sr(sT3), mods='offen sc1', tag='zkv')
        a.stamp(41)
        srd(a, S_DBG, 20, 256)
        a('s_lshl_b32', sr(sT0), sr(sI), '2')
        a('s_add_u32', sr(sT0), sr(sT0), sr(sM))
        a('s_mul_i32', sr(sHb), sr(sT0), str(144 * 1024))
        a('s_mov_b32', sr(sMask), '0xffff'); a('s_mov_b32', sr(sMask + 1), '0xffff')
        a('s_lshl_b32', sr(sT0), sr(sC), '12')
        a('s_add_u32', sr(sAccC), sr(sAcc), sr(sT0))
        a('s_lshl_b32', sr(sArow), sr(sI), '2')
        a('s_lshl_b32', sr(sAcol), sr(sJ), '2')
        a('s_add_u32', sr(sAcol), sr(sAcol), '128')
        a('s_lshl_b32', sr(sT0), sr(sC), '7')
        a('s_add_u32', sr(sCT), sr(sT0), hex(CTB))
        a('s_lshl_b32', sr(sT0), sr(sFo), '5')
        a('s_add_u32', sr(sHq), sr(sHb), sr(sT0))
        a('s_lshl_b32', sr(sT1), sr(sC), '11')
        a('s_add_u32', sr(sHq), sr(sHq), sr(sT1))
        a('s_lshl_b32', sr(sT0), sr(sFo2), '5')
        a('s_add_u32', sr(sHq2), sr(sHb), sr(sT0))
        if typ == 'E':
            a('s_add_u32', sr(sHq2), sr(sHq2), sr(sT1))
            a('s_lshl_b32', sr(sT0), sr(sP), '12')
            a('s_add_u32', sr(sHo), sr(sHb), sr(sT0))
            a('s_add_u32', sr(sHo), sr(sHo), sr(sT1))
            a('s_add_u32', sr(sHo), sr(sHo), str(112 * 1024))
        else:
            a('s_lshl_b32', sr(sT1), sr(sC), '10')
            a('s_add_u32', sr(sHq2), sr(sHq2), sr(sT1))
            a('v_mov_b32', vr(vOnes), '0x3f803f80')
        T = vT4
        a('v_mov_b32', vr(T), hex(FLG))
        a('v_mov_b32', vr(T + 2), '0'); a('v_mov_b32', vr(T + 3), '0')
        a('ds_write_b64', vr(T), vr(T + 2, 2))
        a('ds_write_b32', vr(T), vr(T + 2), mods='offset:8')
        s.lq_bases('Q', [vT4, vT4 + 1, vT4 + 2, vT4 + 3])
        t = vT4
        a('v_bfe_u32', vr(t), vr(vL16), '4', '5')
        a('s_lshl_b32', sr(sT0), sr(sM), '5')
        a('v_add_u32', vr(t + 1), sr(sT0), vr(t))
        a('v_lshlrev_b32', vr(t + 1), '7', vr(t + 1))
        a('v_bfe_u32', vr(t + 2), vr(vL16), '5', '3')
        a('v_lshrrev_b32', vr(t + 3), '9', vr(vL16))
        a('v_xor_b32', vr(t + 2), vr(t + 2), vr(t + 3))
        for kq in range(4):
            a('v_xor_b32', vr(t + 3), str(2 * kq), vr(t + 2))
            a('v_lshl_add_u32', vr(vP + kq), vr(t + 3), '4', vr(t + 1))
            a('v_add_u32', vr(vP + 4 + kq), '0x10000', vr(vP + kq))
        if not LOCAL:
            t = vTA
            a('s_min_u32', sr(sT6), sr(sW), '4')
            if typ == 'E':
                cands = [(S_G, sFo, 0), (S_U, sFo, 0), (S_Q, sQo, 0), (S_G, sFo2, 0), (S_U, sFo2, 0)]
            else:
                cands = [(S_Q, sQo, 1024), (S_Q, sQo, 2048), (S_G, sFo, 0), (S_U, sFo, 0), (S_G, sFo2, 0)]
            for k in range(3): a('s_mov_b32', sr(S_T0 + k), sr(cands[0][0] + k))
            a('s_add_u32', sr(sT7), sr(cands[0][1]), str(cands[0][2]))
            a('s_mov_b32', sr(sT8), '3584' if cands[0][0] != S_Q else '3072')
            for sg in range(1, 5):
                c = cands[sg]
                a('s_add_u32', sr(sT1), sr(c[1]), str(c[2]))
                a('s_cmp_eq_u32', sr(sT6), str(sg))
                for k in range(3): a('s_cselect_b32', sr(S_T0 + k), sr(c[0] + k), sr(S_T0 + k))
                a('s_cselect_b32', sr(sT7), sr(sT1), sr(sT7))
                a('s_cselect_b32', sr(sT8), '3072' if c[0] == S_Q else '3584', sr(sT8))
            a('s_mov_b32', sr(S_T0 + 3), '0x20000')
            for k in range(3): a('s_mov_b32', sr(S_T1 + k), sr(S_T0 + k))
            a('s_mov_b32', sr(S_T1 + 3), '0x20000')
            a('v_lshrrev_b32', vr(t), '7', vr(vL16))
            a('v_mul_lo_u32', vr(t), vr(t), sr(sT8))
            a('v_bfe_u32', vr(t + 1), vr(vL16), '4', '3')
            a('v_bfe_u32', vr(t + 2), vr(vL16), '8', '1')
            a('v_lshlrev_b32', vr(t + 2), '2', vr(t + 2))
            a('v_xor_b32', vr(t + 1), vr(t + 1), vr(t + 2))
            a('v_lshl_add_u32', vr(t), vr(t + 1), '4', vr(t))
            a('v_mov_b32', vr(t + 1), vr(t))
            a('s_lshl_b32', sr(sT0), sr(sI), '5')
            a('s_mul_i32', sr(sT0), sr(sT0), sr(sT8))
            a('s_add_u32', sr(sT7), sr(sT7), sr(sT0))
            a('s_lshl_b32', sr(sT1), sr(sT8), '3')
            a('s_lshl_b32', sr(sT2), sr(sT8), '4')
            a('s_add_u32', sr(sT3), sr(sT1), sr(sT2))
            if typ == 'O':
                a('s_cmp_eq_u32', sr(sC), '1')
                for k in range(3): a('s_cselect_b32', sr(S_T1 + k), sr(S_U + k), sr(S_T1 + k))
                a('s_cselect_b32', sr(sT1), '57344', sr(sT1))
                a('s_cselect_b32', sr(sT2), '0', sr(sT2))
                a('s_cselect_b32', sr(sT3), '57344', sr(sT3))
                a('v_lshrrev_b32', vr(t + 2), '6', vr(vL16))
                a('v_mul_u32_u24', vr(t + 2), '3584', vr(t + 2))
                a('v_and_b32', vr(t + 3), '48', vr(vL16))
                a('v_add_u32', vr(t + 2), vr(t + 2), vr(t + 3))
                a('v_xor_b32', vr(t + 3), '32', vr(t + 2))
                a('s_cselect_b64', 'vcc', '-1', '0')
                a('v_cndmask_b32', vr(t), vr(t), vr(t + 2))
                a('v_cndmask_b32', vr(t + 1), vr(t + 1), vr(t + 3))
            a('s_min_u32', sr(sT4), sr(sW), '5')
            a('s_lshl_b32', sr(sT4), sr(sT4), '12')
            a('s_add_u32', sr(sScr), sr(sT4), hex(SCR))
            a('s_cmp_ge_u32', sr(sW), '5')
            a('s_cselect_b32', sr(S_T0 + 2), '0', sr(S_T0 + 2))
            a('s_cselect_b32', sr(S_T1 + 2), '0', sr(S_T1 + 2))
            a('s_add_u32', sr(sO1), sr(sT7), sr(sT1))
            a('s_add_u32', sr(sO2), sr(sT7), sr(sT2))
            a('s_add_u32', sr(sO3), sr(sT7), sr(sT3))
            a('s_mov_b32', sr(sO0), sr(sT7))
        a.stamp(42)
        s.issue_more(now=True)
        a.stamp(43)
        if LOCAL: s.local_setup()
        if not LOCAL:
            a.wait_tag('zrc')
            T = vT4
            s.tid0(T, T + 1)
            a('s_mov_b32', sr(sT1), hex(OOB))
            a('s_cmp_eq_u32', sr(sJ), '0')
            a('s_cselect_b32', sr(sT0), sr(sArow), sr(sT1))
            a('buffer_store_dword', vr(T + 1), vr(T), sr(S_DBG, 4), sr(sT0), mods='offen sc1')
            a('s_cmp_eq_u32', sr(sI), '0')
            a('s_cselect_b32', sr(sT0), sr(sAcol), sr(sT1))
            a('buffer_store_dword', vr(T + 1), vr(T), sr(S_DBG, 4), sr(sT0), mods='offen sc1')
        a.stamp(44)

    def sparse_pf(s, phase):
        a = s.a; typ = s.typ
        if typ == 'E':
            mats = {'GU0': [(S_G, sFo, 0, 3584), (S_U, sFo, 0, 3584)], 'GU1': [(S_G, sFo2, 0, 3584), (S_U, sFo2, 0, 3584)], 'QP': [(S_Q, sQo, 0, 3072), None]}
        else:
            mats = {'KV': [(S_Q, sQo, 1024, 3072), (S_Q, sQo, 2048, 3072)], 'P2': [(S_G, sFo2, 0, 3584), (S_U, sFo2, 0, 3584)], 'GU0': [(S_G, sFo, 0, 3584), (S_U, sFo, 0, 3584)]}
        R = [mats[r] for r in s.rounds]
        if phase == 0: tab = ['X', R[0][0], R[0][1], R[1][0]]
        else: tab = [R[1][1], R[2][0], R[2][1], None]
        T = S_T0
        t0, t1 = vG, vG + 1
        first = [e for e in tab if e not in ('X', None)][0]
        a('s_lshr_b32', sr(sT2), sr(sW), '1')
        for k in range(3): a('s_mov_b32', sr(T + k), sr(first[0] + k))
        a('s_add_u32', sr(sT3), sr(first[1]), str(first[2]))
        a('s_mov_b32', sr(sT1), str(first[3]))
        for sel, e in enumerate(tab):
            if e in ('X',) or e is first: continue
            if e is None:
                a('s_cmp_eq_u32', sr(sT2), str(sel))
                a('s_cselect_b32', sr(T + 2), '0', sr(T + 2))
                continue
            a('s_add_u32', sr(sT0), sr(e[1]), str(e[2]))
            a('s_cmp_eq_u32', sr(sT2), str(sel))
            for k in range(3): a('s_cselect_b32', sr(T + k), sr(e[0] + k), sr(T + k))
            a('s_cselect_b32', sr(sT3), sr(sT0), sr(sT3))
            a('s_cselect_b32', sr(sT1), str(e[3]), sr(sT1))
        a('s_mov_b32', sr(T + 3), '0x20000')
        a('s_and_b32', sr(sT0), sr(sI), '3')
        a('s_lshl_b32', sr(sT0), sr(sT0), '1')
        a('s_and_b32', sr(sT4), sr(sW), '1')
        a('s_add_u32', sr(sT0), sr(sT0), sr(sT4))
        a('s_lshl_b32', sr(sT0), sr(sT0), '6')
        a('v_lshrrev_b32', vr(t0), '4', vr(vL16))
        a('v_add_u32', vr(t0), sr(sT0), vr(t0))
        a('v_mul_lo_u32', vr(t0), vr(t0), sr(sT1))
        a('v_add_u32', vr(t0), sr(sT3), vr(t0))
        if 'X' in tab:
            a('s_and_b32', sr(sT0), sr(sJ), '7')
            a('s_lshl_b32', sr(sT0), sr(sT0), '1')
            a('s_add_u32', sr(sT0), sr(sT0), sr(sT4))
            a('s_lshl_b32', sr(sT0), sr(sT0), '3')
            a('v_lshrrev_b32', vr(t1), '7', vr(vL16))
            a('v_add_u32', vr(t1), sr(sT0), vr(t1))
            a('v_lshlrev_b32', vr(t1), '10', vr(t1))
            a('v_add_u32', vr(t1), sr(sXoff), vr(t1))
            a('v_bfe_u32', vr(vG + 2), vr(vL16), '4', '3')
            a('v_lshl_add_u32', vr(t1), vr(vG + 2), '7', vr(t1))
            a('s_cmp_eq_u32', sr(sT2), '0')
            for k in range(3): a('s_cselect_b32', sr(T + k), sr(S_X + k), sr(T + k))
            a('s_cselect_b64', 'vcc', '-1', '0')
            a('v_cndmask_b32', vr(t0), vr(t0), vr(t1))
        a('buffer_load_dword', vr(vX + 120 + phase), vr(t0), sr(T, 4), '0', mods='offen')

    def late_loads(s):
        a = s.a
        L = []
        def row():
            a('s_lshl_b32', sr(sT0), sr(sI), '7')
            a('s_lshl_b32', sr(sT1), sr(sJ), '3')
            a('s_add_u32', sr(sT0), sr(sT0), sr(sT1))
            a('s_add_u32', sr(sT5), sr(sT0), sr(sW))
            a('s_lshl_b32', sr(sT0), sr(sT5), '10')
            a('buffer_load_dwordx4', vr(acc(1, 0), 4), vr(vL16), sr(S_X, 4), sr(sT0), mods='offen')
        L.append(row)
        t = vTA
        for e in range(4):
            def f(e=e):
                a('s_add_u32', 'm0', sr(sScr), str(e * 1024))
                a('s_nop', '0')
                a('buffer_load_dwordx4', vr(t + (0 if e < 2 else 1)), sr((S_T0 if e < 2 else S_T1), 4), sr([sO0, sO1, sO2, sO3][e]), mods='offen lds', tag='slice' if e == 3 else None)
            L.append(f)
        def code(i):
            def f():
                a('s_and_b32', sr(sT0), sr(sSlot), '3')
                a('s_lshl_b32', sr(sT0), sr(sT0), '13')
                a('s_add_u32', sr(sT0), sr(sT0), sr(sM0))
                a('s_add_u32', sr(sT0), sr(sT0), '8192')
                a('v_add_u32', vr(vTA + 6), sr(sT0), vr(vL16))
                a('global_load_dwordx4', vr(vX + 116, 4), vr(vTA + 6), sr(sPC, 2))
            return f
        L.append(code(0) if not P('FLP', 1) else (lambda: None))
        return L

    def local_setup(s):
        a = s.a
        t = vT4
        a('s_lshl_b32', sr(sT0), sr(sC), '1')
        a('s_add_u32', sr(sT0), sr(sT0), sr(sM))
        a('s_and_b32', sr(sOwn), sr(sT0), '3')
        a('s_lshl_b32', sr(sT0), sr(sC), '10')
        a('s_add_u32', sr(sCs), sr(sT0), hex(CSB))
        a('s_lshl_b32', sr(sT0), sr(sM), '2')
        a('s_add_u32', sr(sCsw), sr(sCs), sr(sT0))
        a('v_bfe_u32', vr(t), vr(vL16), '4', '4')
        a('v_bfe_u32', vr(t + 1), vr(vL16), '8', '1')
        a('v_cmp_eq_u32', 'vcc', vr(t), vr(t + 1))
        a('v_mov_b32', vr(t + 2), '0x3f803f80')
        a('v_mov_b32', vr(t + 3), '0')
        for i in range(4): a('v_cndmask_b32', vr(vSel + i), vr(t + 3), vr(t + 2))
        for i in range(4): a('v_mov_b32', vr(vTA + i), '0')

    def announce_kv(s):
        a = s.a
        T = vT4
        s.tid0(T, T + 1)
        a('s_lshl_b32', sr(sT0), sr(sP), '2')
        a('s_add_u32', sr(sT0), sr(sT0), '192')
        a('s_cmp_eq_u32', sr(sI), '0')
        a('s_cselect_b32', sr(sT0), sr(sT0), hex(OOB))
        a('buffer_store_dword', vr(T + 1), vr(T), sr(S_DBG, 4), sr(sT0), mods='offen sc1')

    def row_stats_ops(s):
        ops = []
        a = lambda mn, *x, **k: ops.append(mkop(mn, *x, **k))
        X = acc(1, 0); A = acc(1, 0) + 4
        ones = acc(1, 0) + 8
        a('v_mov_b32', vr(ones), '0x3f803f80')
        a('v_dot2_f32_bf16', vr(A), vr(X), vr(ones), '0')
        a('v_dot2_f32_bf16', vr(A + 1), vr(X), vr(X), '0')
        for i in range(1, 4):
            a('v_dot2c_f32_bf16', vr(A), vr(X + i), vr(ones))
            a('v_dot2c_f32_bf16', vr(A + 1), vr(X + i), vr(X + i))
        for dpp in ('row_shr:1', 'row_shr:2', 'row_shr:4', 'row_shr:8'):
            for r in (A, A + 1):
                a('v_add_f32_dpp', vr(r), vr(r), vr(r), mods='%s row_mask:0xf bank_mask:0xf bound_ctrl:0' % dpp)
        for dpp, rm in (('row_bcast:15', '0xa'), ('row_bcast:31', '0xc')):
            for r in (A, A + 1):
                a('v_add_f32_dpp', vr(r), vr(r), vr(r), mods='%s row_mask:%s bank_mask:0xf' % (dpp, rm))
        def rbf(r):
            a('v_cvt_pk_bf16_f32', vr(r), vr(r), vr(r)); a('v_lshlrev_b32', vr(r), '16', vr(r))
        a('v_mul_f32', vr(A), lit(1.0 / 512), vr(A))
        a('v_mul_f32', vr(A + 1), lit(1.0 / 512), vr(A + 1))
        a('v_fma_f32', vr(A + 1), '-' + vr(A), vr(A), vr(A + 1))
        a('v_max_f32', vr(A + 1), '0', vr(A + 1))
        rbf(A); rbf(A + 1)
        a('v_add_f32', vr(A + 1), lit(1e-5), vr(A + 1))
        rbf(A + 1)
        a('v_sqrt_f32', vr(A + 1), vr(A + 1))
        rbf(A + 1)
        a('v_mov_b32', vr(A + 2), hex(OOB))
        a('v_mov_b32', vr(A + 3), '0')
        a('v_cmp_eq_u32', 'vcc', '1008', vr(vL16))
        a('v_cndmask_b32', vr(A + 2), vr(A + 2), vr(A + 3))
        a('s_lshl_b32', sr(sF0), sr(sT5), '3')
        a('s_add_u32', sr(sF0), sr(sF0), hex(STAT_OFF))
        a('buffer_store_dwordx2', vr(A, 2), vr(A + 2), sr(S_H, 4), sr(sF0), mods='offen sc1')
        return ops

    def cs_slice_ops(s):
        ops = []
        typ = s.typ
        a = lambda mn, *x, **k: ops.append(mkop(mn, *x, **k))
        t = acc(1, 0) + 8; P = acc(1, 0)
        a('v_bfe_u32', vr(t), vr(vL16), '4', '4')
        a('v_bfe_u32', vr(t + 1), vr(vL16), '8', '1')
        a('v_cmp_eq_u32', 'vcc', vr(t), vr(t + 1))
        a('v_mov_b32', vr(t + 2), '0x3f803f80')
        a('v_mov_b32', vr(t + 3), '0')
        for i in range(4): a('v_cndmask_b32', vr(vSel + i), vr(t + 3), vr(t + 2))
        a('v_lshrrev_b32', vr(P), '9', vr(vL16))
        a('v_lshlrev_b32', vr(P), '3', vr(P))
        a('v_bfe_u32', vr(P + 1), vr(vL16), '6', '2')
        a('v_add_u32', vr(P), vr(P), vr(P + 1))
        a('v_bfe_u32', vr(P + 1), vr(vL16), '8', '1')
        a('v_bfe_u32', vr(P + 2), vr(vL16), '5', '1')
        a('v_bfe_u32', vr(P + 3), vr(vL16), '4', '1')
        a('v_lshl_add_u32', vr(P + 4), vr(P + 1), '1', vr(P + 2))
        a('v_bfe_u32', vr(P + 5), vr(vL16), '7', '1')
        a('v_lshlrev_b32', vr(P + 5), '2', vr(P + 5))
        a('v_xor_b32', vr(P + 4), vr(P + 4), vr(P + 5))
        a('v_lshlrev_b32', vr(P + 4), '4', vr(P + 4))
        a('v_lshl_add_u32', vr(P + 4), vr(P), '7', vr(P + 4))
        a('v_lshl_add_u32', vr(P + 4), vr(P + 3), '3', vr(P + 4))
        a('v_xor_b32', vr(P + 5), '64', vr(P + 4))
        a('s_mov_b32', sr(sF1), '512')
        if typ == 'O':
            a('v_lshlrev_b32', vr(P + 6), '1', vr(P + 1))
            a('v_xor_b32', vr(P + 6), vr(P + 6), vr(P + 2))
            a('v_lshlrev_b32', vr(P + 6), '4', vr(P + 6))
            a('v_lshl_add_u32', vr(P + 6), vr(P), '6', vr(P + 6))
            a('v_lshl_add_u32', vr(P + 6), vr(P + 3), '3', vr(P + 6))
            a('v_lshl_add_u32', vr(P + 6), vr(P + 1), '11', vr(P + 6))
            a('v_xor_b32', vr(P + 7), '32', vr(P + 6))
            def sel():
                aa = s.a
                aa('s_cmp_eq_u32', sr(sC), '1')
                aa('s_cselect_b64', 'vcc', '-1', '0')
                aa('s_cselect_b32', sr(sF1), '256', sr(sF1))
                aa('v_cndmask_b32', vr(P + 4), vr(P + 4), vr(P + 6))
                aa('v_cndmask_b32', vr(P + 5), vr(P + 5), vr(P + 7))
            ops.append(sel)
        a('v_add_u32', vr(P + 4), sr(sScr), vr(P + 4))
        a('v_add_u32', vr(P + 5), sr(sScr), vr(P + 5))
        a('s_lshl_b32', sr(sF2), sr(sF1), '2')
        a('s_add_u32', sr(sF3), sr(sF2), sr(sF1))
        F = acc(1, 1)
        ops.append(lambda: s.a.wait_tag('slice'))
        offs = [None, sF1, sF2, sF3]
        for cp in range(2):
            for k in range(4):
                ks, q = k // 2, k % 2
                if offs[k] is None:
                    ad = P + 4 + cp
                else:
                    ad = P + (k % 2)
                    a('v_add_u32', vr(ad), sr(offs[k]), vr(P + 4 + cp))
                a('ds_read_b64_tr_b16', vr(F + (cp * 2 + ks) * 4 + 2 * q, 2), vr(ad))
        ops += [None] * 6
        Da = vCs; Db = vCs + 4
        a(MF16, vr(Da, 4), vr(vSel, 4), vr(F, 4), '0')
        a(MF16, vr(Db, 4), vr(vSel, 4), vr(F + 8, 4), '0')
        a(MF16, vr(Da, 4), vr(vSel, 4), vr(F + 4, 4), vr(Da, 4))
        a(MF16, vr(Db, 4), vr(vSel, 4), vr(F + 12, 4), vr(Db, 4))
        ops += [None] * 8
        a('v_permlane16_swap_b32', vr(Da), vr(Da + 1))
        a('v_permlane16_swap_b32', vr(Db), vr(Db + 1))
        ops += [None] * 2
        a('v_permlane32_swap_b32', vr(Da), vr(Db))
        def st():
            aa = s.a
            aa('s_lshl_b32', sr(sF0), sr(sJ), '4')
            aa('s_add_u32', sr(sF0), sr(sF0), sr(sI))
            aa('s_mul_i32', sr(sF0), sr(sF0), '1280')
            aa('s_lshl_b32', sr(sF1), sr(sW), '8')
            aa('s_add_u32', sr(sF0), sr(sF0), sr(sF1))
            aa('s_add_u32', sr(sF0), sr(sF0), hex(CSP_OFF))
            aa('s_cmp_le_u32', sr(sW), '4')
            aa('s_cselect_b32', sr(sF0), sr(sF0), hex(OOB - 0x10000))
            aa('v_lshrrev_b32', vr(P), '2', vr(vL16))
            aa('buffer_store_dword', vr(Da), vr(P), sr(S_H, 4), sr(sF0), mods='offen sc1', tag='pub')
        ops.append(st)
        return ops

    def cond(s, sreg, val, ops):
        a = s.a
        if 'nocond' in EXP: return
        items = []
        for op in ops:
            for r in list(op.rd) + list(op.wr):
                if r in a.pend: items.append(a.pend[r])
        a.need(items)
        s.nlab += 1
        lab = 'L_k1%s_c%d' % (s.typ, s.nlab)
        a('s_cmp_eq_u32', sr(sreg), str(val))
        a.raw('  s_cbranch_scc1 %s' % lab); a.pos += 1
        main_out = a.out
        a.out = s.ool
        a.label(lab)
        p0 = a.pos
        for op in ops: a.emit(op)
        a.raw('  s_branch %s_r' % lab)
        a.out = main_out
        a.label(lab + '_r')
        a.pos = p0
        for dct in (a.w_valu, a.w_trans, a.w_vsgpr, a.st_data):
            for k, v in dct.items():
                if v >= p0: dct[k] = p0 - 1
        for k, v in list(a.w_mfma.items()):
            if v[0] >= p0: a.w_mfma[k] = (p0 - 1,) + v[1:]
        for k, v in list(a.r_mfmac.items()):
            if v[0] >= p0: a.r_mfmac[k] = (p0 - 1,) + v[1:]

    def cs_write_ops(s, r):
        ops = []
        o = lambda mn, *x, **k: ops.append(mkop(mn, *x, **k))
        units = 1 if s.pair(r) else 2
        par = r % 2
        T = vT4
        o('v_mov_b32', vr(T + 1), hex(DUMMYL))
        o('v_add_u32', vr(T), sr(sCsw), vr(vL16))
        o('v_cmp_gt_u32', 'vcc', '256', vr(vL16))
        o('v_cndmask_b32', vr(T), vr(T + 1), vr(T))
        for u in range(units):
            off = par * 2048 + u * 512
            o('ds_write_b32', vr(T), vr(vCs + 4 * u), mods='offset:%d' % off)
            o('ds_write_b32', vr(T), vr(vCs + 4 * u + 1), mods='offset:%d' % (off + 256))
        return ops

    def ext_ops_local(s, r):
        ops = []
        o = lambda mn, *x, **k: ops.append(mkop(mn, *x, **k))
        units = 1 if s.pair(r) else 2
        par = r % 2
        T = vT4
        o('v_and_b32', vr(T), '0x1f0', vr(vL16))
        o('v_add_u32', vr(T), sr(sCs), vr(T))
        for u in range(units):
            o('ds_read_b128', vr(vP + 4 * u, 4), vr(T), mods='offset:%d' % (par * 2048 + u * 512))
        for u in range(units):
            Q = vP + 4 * u
            o('v_add_f32', vr(Q), vr(Q), vr(Q + 1))
            o('v_add_f32', vr(Q + 2), vr(Q + 2), vr(Q + 3))
            o('v_add_f32', vr(Q), vr(Q), vr(Q + 2))
            o('v_cvt_pk_bf16_f32', vr(Q + 1), vr(Q), vr(Q))
            o('v_lshlrev_b32', vr(Q + 1), '16', vr(Q + 1))
            o('v_sub_f32', vr(Q + 1), vr(Q), vr(Q + 1))
            o('v_cvt_pk_bf16_f32', vr(vWE), vr(Q), vr(Q + 1))
            ops += [None]
            Dd = acc(r % 2, u)
            if s.rounds[r] == 'KV':
                o(MF8, vr(Dd, 16), vr(vXE, 2), vr(vWE, 2), vr(Dd, 16))
            else:
                o(MF8, vr(Dd, 16), vr(vWE, 2), vr(vXE, 2), vr(Dd, 16))
        ops += [None] * 3
        return ops

    def diag_ops(s):
        ops = []
        o = lambda mn, *x, **k: ops.append(mkop(mn, *x, **k))
        G = acc(1, 0)
        o('v_mov_b32', vr(vTA + 4), '0'); o('v_mov_b32', vr(vTA + 5), '0')
        for r in range(16):
            m = 0
            for h in range(2):
                j = (r >> 2) * 8 + h * 4 + (r & 3)
                m |= 1 << (j + 32 * h)
            sp = sT2 if r % 2 == 0 else sMk2
            o('s_mov_b32', sr(sp), hex(m & 0xffffffff))
            o('s_mov_b32', sr(sp + 1), hex(m >> 32))
            o('v_cndmask_b32', vr(vTA + 4 + (r & 1)), vr(vTA + 4 + (r & 1)), vr(G + r), sr(sp, 2))
        o('v_add_f32', vr(vTA + 4), vr(vTA + 4), vr(vTA + 5))
        return ops

    def stats_finish_write_l(s):
        ops = []
        o = lambda mn, *x, **k: ops.append(mkop(mn, *x, **k))
        T = vT4
        o('v_and_b32', vr(T), '0x1f0', vr(vL16))
        o('v_lshrrev_b32', vr(T + 1), '9', vr(vL16))
        o('v_lshl_add_u32', vr(T), vr(T + 1), '2', vr(T))
        o('s_lshl_b32', sr(sT1), sr(sM), '9')
        o('s_lshl_b32', sr(sT2), sr(sC), '3')
        o('s_add_u32', sr(sT1), sr(sT1), sr(sT2))
        o('s_add_u32', sr(sT1), sr(sT1), hex(SQB))
        o('v_add_u32', vr(T), sr(sT1), vr(T))
        o('ds_write_b32', vr(T), vr(vTA + 4))
        o('v_lshrrev_b32', vr(T), '1', vr(vL16))
        o('s_lshl_b32', sr(sT1), sr(sM), '8')
        o('s_lshl_b32', sr(sT2), sr(sC), '2')
        o('s_add_u32', sr(sT1), sr(sT1), sr(sT2))
        o('s_add_u32', sr(sT1), sr(sT1), hex(SUMB))
        o('v_add_u32', vr(T), sr(sT1), vr(T))
        o('v_mov_b32', vr(T + 1), hex(DUMMYL))
        o('v_cmp_gt_u32', 'vcc', '256', vr(vL16))
        o('v_cndmask_b32', vr(T), vr(T + 1), vr(T))
        o('ds_write_b32', vr(T), vr(vTA))
        o('ds_write_b32', vr(T), vr(vTA + 1), mods='offset:128')
        return ops

    def stats_finish_read_l(s):
        ops = []
        o = lambda mn, *x, **k: ops.append(mkop(mn, *x, **k))
        T = vT4; A = vTA
        o('v_and_b32', vr(T), '0x1f0', vr(vL16))
        o('s_lshl_b32', sr(sT1), sr(sM), '9')
        o('s_add_u32', sr(sT1), sr(sT1), hex(SQB))
        o('v_add_u32', vr(T + 1), sr(sT1), vr(T))
        o('ds_read_b128', vr(A + 4, 4), vr(T + 1))
        o('v_lshrrev_b32', vr(T), '1', vr(T))
        o('s_lshl_b32', sr(sT1), sr(sM), '8')
        o('s_add_u32', sr(sT1), sr(sT1), hex(SUMB))
        o('v_add_u32', vr(T + 1), sr(sT1), vr(T))
        o('ds_read_b64', vr(A, 2), vr(T + 1))
        ops += [None] * 4
        o('v_add_f32', vr(A + 4), vr(A + 4), vr(A + 5)); o('v_add_f32', vr(A + 6), vr(A + 6), vr(A + 7))
        o('v_add_f32', vr(A), vr(A), vr(A + 1)); o('v_add_f32', vr(A + 4), vr(A + 4), vr(A + 6))
        o('v_mul_f32', vr(A), lit(1.0 / 512), vr(A))
        o('v_mul_f32', vr(A + 4), lit(1.0 / 512), vr(A + 4))
        o('v_fma_f32', vr(A + 4), '-' + vr(A), vr(A), vr(A + 4))
        o('v_max_f32', vr(A + 4), '0', vr(A + 4))
        def rbf(r):
            o('v_cvt_pk_bf16_f32', vr(r), vr(r), vr(r)); o('v_lshlrev_b32', vr(r), '16', vr(r))
        o('v_sub_f32', vr(A + 1), '0', vr(A))
        o('v_cvt_pk_bf16_f32', vr(A + 1), vr(A + 1), vr(A + 1))
        o('v_cmp_gt_u32', 'vcc', '512', vr(vL16))
        o('v_mov_b32', vr(A + 2), '0')
        o('v_cndmask_b32', vr(vXE), vr(A + 2), vr(A + 1))
        rbf(A + 4)
        o('v_add_f32', vr(A + 4), lit(1e-5), vr(A + 4))
        rbf(A + 4)
        o('v_sqrt_f32', vr(A + 4), vr(A + 4))
        ops.append(None)
        rbf(A + 4)
        o('v_rcp_f32', vr(A + 5), vr(A + 4))
        o('v_mul_f32', vr(vCC), vr(A + 4), vr(A + 4))
        o('v_mul_f32', vr(vK0), lit(K0), vr(A + 5))
        o('v_mul_f32', vr(A + 6), vr(A + 5), vr(A + 5))
        o('v_mul_f32', vr(A + 6), vr(A + 6), vr(A + 5))
        o('v_mul_f32', vr(vK1), lit(K1C), vr(A + 6))
        if s.typ == 'E':
            o('v_mov_b32', vr(vRS), vr(A + 5))
        else:
            o('v_lshrrev_b32', vr(T), '1', vr(T))
            o('s_lshl_b32', sr(sT1), sr(sM), '7')
            o('s_add_u32', sr(sT1), sr(sT1), hex(RSB))
            o('v_add_u32', vr(T), sr(sT1), vr(T))
            o('ds_write_b32', vr(T), vr(A + 5))
        return ops

    def gather_loads(s):
        a = s.a
        T = vTA
        a('v_and_b32', vr(T + 4), '0x1f0', vr(vL16))
        a('v_lshrrev_b32', vr(T + 4), '1', vr(T + 4))
        a('s_lshl_b32', sr(sT1), sr(sI), '10')
        a('s_lshl_b32', sr(sT2), sr(sM), '8')
        a('s_add_u32', sr(sT1), sr(sT1), sr(sT2))
        a('s_add_u32', sr(sT1), sr(sT1), hex(STAT_OFF))
        a('buffer_load_dwordx2', vr(T, 2), vr(T + 4), sr(S_H, 4), sr(sT1), mods='offen sc1')
        a('s_mul_i32', sr(sT1), sr(sJ), str(16 * 1280))
        a('s_lshl_b32', sr(sT2), sr(sW), '8')
        a('s_add_u32', sr(sT1), sr(sT1), sr(sT2))
        a('s_add_u32', sr(sT1), sr(sT1), hex(CSP_OFF))
        a('s_cmp_le_u32', sr(sW), '4')
        a('s_cselect_b32', sr(sT1), sr(sT1), hex(OOB - 0x10000))
        a('v_lshrrev_b32', vr(T + 5), '2', vr(vL16))
        for i in range(16):
            a('buffer_load_dword', vr(s.greg(i)), vr(T + 5), sr(S_H, 4), sr(sT1), mods='offen offset:%d sc1' % ((i % 3) * 1280))
            if i % 3 == 2: a('s_add_u32', sr(sT1), sr(sT1), str(3 * 1280))

    def greg(s, i):
        return vG + i if i < 12 else vT4 + (i - 12)

    def gather_finish(s):
        ops = []
        o = lambda mn, *x, **k: ops.append(mkop(mn, *x, **k))
        g = s.greg
        for st in (1, 2, 4, 8):
            for i in range(0, 16, 2 * st):
                o('v_add_f32', vr(g(i)), vr(g(i)), vr(g(i + st)))
        T = vTA
        o('s_lshl_b32', sr(sT1), sr(sW), '8')
        o('s_add_u32', sr(sT1), sr(sT1), hex(CTB))
        o('s_cmp_le_u32', sr(sW), '4')
        o('s_cselect_b32', sr(sT1), sr(sT1), hex(DUMMY))
        o('v_add_u32', vr(T + 5), sr(sT1), vr(T + 5))
        o('ds_write_b32', vr(T + 5), vr(g(0)))
        A = vTA
        o('v_sub_f32', vr(A + 2), '0', vr(A))
        o('v_cvt_pk_bf16_f32', vr(A + 2), vr(A + 2), vr(A + 2))
        o('v_cmp_gt_u32', 'vcc', '512', vr(vL16))
        o('v_mov_b32', vr(A + 3), '0')
        o('v_cndmask_b32', vr(vXE), vr(A + 3), vr(A + 2))
        o('v_rcp_f32', vr(A + 5), vr(A + 1))
        o('v_mul_f32', vr(vCC), vr(A + 1), vr(A + 1))
        o('v_mul_f32', vr(vK0), lit(K0), vr(A + 5))
        o('v_mul_f32', vr(A + 6), vr(A + 5), vr(A + 5))
        o('v_mul_f32', vr(A + 6), vr(A + 6), vr(A + 5))
        o('v_mul_f32', vr(vK1), lit(K1C), vr(A + 6))
        if s.typ == 'E':
            o('v_mov_b32', vr(vRS), vr(A + 5))
        else:
            o('v_lshrrev_b32', vr(A + 4), '1', vr(A + 4))
            o('s_lshl_b32', sr(sT1), sr(sM), '7')
            o('s_add_u32', sr(sT1), sr(sT1), hex(RSB))
            o('v_add_u32', vr(A + 4), sr(sT1), vr(A + 4))
            o('ds_write_b32', vr(A + 4), vr(A + 5))
        return ops

    SEGS = {'E': [(0, 1), (3, 4), (2,)], 'O': ([(0, 1), (4,), (2, 3)] if P('ORDO', 1) else [(0, 1), (2, 3), (4,)])}

    def ext_ops(s, r):
        ops = []
        o = lambda mn, *x, **k: ops.append(mkop(mn, *x, **k))
        segs = s.SEGS[s.typ][r]
        T = vT4
        o('v_and_b32', vr(T), '0x1f0', vr(vL16))
        o('v_lshrrev_b32', vr(T), '2', vr(T))
        o('v_add_u32', vr(T), sr(sCT), vr(T))
        for u, sg in enumerate(segs):
            o('ds_read_b32', vr(T + 1 + u), vr(T), mods='offset:%d' % (sg * 256))
        ops += [None] * 3
        for u, sg in enumerate(segs):
            Q = T + 1 + u
            o('v_cvt_pk_bf16_f32', vr(T + 3), vr(Q), vr(Q))
            o('v_lshlrev_b32', vr(T + 3), '16', vr(T + 3))
            o('v_sub_f32', vr(T + 3), vr(Q), vr(T + 3))
            o('v_cvt_pk_bf16_f32', vr(vWE), vr(Q), vr(T + 3))
            ops += [None]
            Dd = acc(r % 2, u)
            if s.rounds[r] == 'KV':
                o(MF8, vr(Dd, 16), vr(vXE, 2), vr(vWE, 2), vr(Dd, 16))
            else:
                o(MF8, vr(Dd, 16), vr(vWE, 2), vr(vXE, 2), vr(Dd, 16))
        ops += [None] * 3
        return ops

    def l2_prefetch(s):
        a = s.a
        srd(a, S_WD, 16, 1792 * 1024); srd(a, S_WO, 8, 512 * 1024)
        t = vTA
        a('s_mul_i32', sr(sT2), sr(sSlot), '72')
        a('s_mul_i32', sr(sT3), sr(sW), '9')
        a('s_add_u32', sr(sT2), sr(sT2), sr(sT3))
        a('v_lshrrev_b32', vr(t), '6', vr(vL16))
        a('v_add_u32', vr(t), sr(sT2), vr(t))
        a('v_lshlrev_b32', vr(t), '10', vr(t))
        a('v_and_b32', vr(t + 1), '48', vr(vL16))
        a('v_lshlrev_b32', vr(t + 1), '3', vr(t + 1))
        a('v_add_u32', vr(t), vr(t), vr(t + 1))
        a('s_lshl_b32', sr(sT2), sr(sB), '9')
        a('v_add_u32', vr(t), sr(sT2), vr(t))
        a('v_mov_b32', vr(t + 1), hex(OOB))
        a('v_cmp_gt_u32', 'vcc', '576', vr(vL16))
        a('v_cndmask_b32', vr(t), vr(t + 1), vr(t))
        if 'nopfw' not in EXP:
            a('buffer_load_dword', vr(t + 2), vr(t), sr(S_WD, 4), '0', mods='offen')
            a('v_subrev_u32', vr(t + 1), str(1792 * 1024), vr(t))
            a('buffer_load_dword', vr(t + 3), vr(t + 1), sr(S_WO, 4), '0', mods='offen')
        a.raw('  s_getpc_b64 s[%d:%d]' % (sPC, sPC + 1)); a.pos += 1
        lab = 'L_k1_pc2%s' % s.typ
        a.label(lab)
        a.raw('  s_add_u32 s%d, s%d, %s-%s' % (sPC, sPC, 'L_k2f' if FUSE else 'k2_kernel', lab)); a.pos += 1
        a.raw('  s_addc_u32 s%d, s%d, 0' % (sPC + 1, sPC + 1)); a.pos += 1
        a('v_add_u32', vr(t + 4), sr(sM0), vr(vL16))
        a('global_load_dword', vr(t + 5), vr(t + 4), sr(sPC, 2))
        a('v_add_u32', vr(t + 4), '0x2000', vr(t + 4))
        a('global_load_dword', vr(t + 6), vr(t + 4), sr(sPC, 2))

    def o_loads(s):
        a = s.a
        L = acc(0, 1); T = vTA
        a('v_lshrrev_b32', vr(T), '2', vr(vL16))
        a('v_xor_b32', vr(T + 1), '64', vr(T))
        for j in range(8):
            a('buffer_load_dword', vr(L + j), vr(T), sr(S_H, 4), sr(sAccC), mods='offen offset:%d sc1' % (j * 256))
        for j in range(8):
            a('buffer_load_dword', vr(L + 8 + j), vr(T + 1), sr(S_H, 4), sr(sAccC), mods='offen offset:%d sc1' % (2048 + j * 256))

    def o_ops(s):
        ops = []
        o = lambda mn, *x, **k: ops.append(mkop(mn, *x, **k))
        L = acc(0, 1); PQ = acc(0, 0); T = vX + 32
        for i in range(4): o('v_cvt_pk_bf16_f32', vr(L + i), vr(L + 2 * i), vr(L + 2 * i + 1))
        for i in range(4): o('v_cvt_pk_bf16_f32', vr(L + 4 + i), vr(L + 8 + 2 * i), vr(L + 8 + 2 * i + 1))
        for h in range(2):
            o(MF, vr(vX + 16 * h, 16), vr(L + 4 * h, 4), vr(PQ + 4 * h, 4), '0')
        ops += ['GAP'] * 6
        for h in range(2): o('v_add_f32', vr(T + h), lit(1e-6), vr(vX + 16 * h + 8))
        for h in range(2): o('v_rcp_f32', vr(T + h), vr(T + h))
        for h in range(2):
            DD = vX + 16 * h
            for r in range(8): o('v_mul_f32', vr(DD + r), vr(DD + r), vr(T + h))
            for i in range(4): o('v_cvt_pk_bf16_f32', vr(T + 4 + 4 * h + i), vr(DD + 2 * i), vr(DD + 2 * i + 1))
            o('s_add_u32', sr(sT2), sr(sHo), str(h * 1024))
            o('buffer_store_dwordx4', vr(T + 4 + 4 * h, 4), vr(vL16), sr(S_H, 4), sr(sT2), mods='offen sc1')
        return ops

    def kv_atomics(s):
        a = s.a
        t = acc(1, 1) if P('ORDO', 1) else acc(0, 1)
        a('v_add_u32', vr(vTA), sr(sM0), vr(vL16))
        a('v_add_u32', vr(vTA), hex(KVL), vr(vTA))
        for m in range(4):
            a('ds_read_b128', vr(t + 4 * m, 4), vr(vTA), mods='offset:%d' % (m * 8192))
        for i in range(4): a('v_add_f32', vr(t + i), vr(t + i), vr(t + 4 + i))
        for i in range(4): a('v_add_f32', vr(t + 8 + i), vr(t + 8 + i), vr(t + 12 + i))
        for i in range(4): a('v_add_f32', vr(t + i), vr(t + i), vr(t + 8 + i))
        a('v_lshrrev_b32', vr(vTA + 1), '2', vr(vL16))
        a('s_add_u32', sr(sT1), sr(sAcc), sr(sM0))
        for r in range(4):
            a('buffer_atomic_add_f32', vr(t + r), vr(vTA + 1), sr(S_H, 4), sr(sT1), mods='offen offset:%d' % (r * 256), tag='kvat' if r == 3 else None)

    def main(s):
        a = s.a; typ = s.typ
        s.setup()
        a.stamp(2)
        steps = [(r, kk) for r in range(3) for kk in range(32)]
        issue_at = {}
        for n, (r, kk) in enumerate(steps):
            t = n - 2 if (s.pair(r) and kk >= 1) else n - 1
            issue_at.setdefault(t, []).append(n)
        bar_after = {}
        for n, (r, kk) in enumerate(steps):
            per = 8 if s.pair(r) else 4
            if kk % per == 0:
                t_issue = [t for t, l in issue_at.items() if n in l][0]
                bar_after.setdefault(t_issue - 1, []).append(s.wst[(r, kk // per)])
        def do_reads(t, u, units):
            for n in issue_at.get(t, []):
                r2, kk2 = steps[n]
                u2n = 1 if s.pair(r2) else 2
                if s.rounds[r2] == 'P2' and kk2 == 0 and u == 0:
                    tb = vXa if r2 == 1 else vG
                    s.lq_bases('P2', [tb, tb + 1, tb + 2, tb + 3] if not LOCAL or r2 == 1 else [vCs + 2, vCs + 3, vCs + 6, vCs + 7])
                if r2 > 0 and s.rounds[r2 - 1] == 'P2' and kk2 == 0 and u == 0:
                    s.lq_bases('Q', [vG, vG + 1, vG + 2, vG + 3] if not LOCAL else [vCs + 2, vCs + 3, vCs + 6, vCs + 7])
                if units == 2 and u2n == 2:
                    s.wread(r2, kk2, only_u=u, xpart=(u == 0))
                elif u == units - 1:
                    s.wread(r2, kk2)
        def w0poll(items):
            a('s_cmp_eq_u32', sr(sW), '0')
            regs = [sW0a, sW0b]
            a('s_mov_b32', sr(sT1), hex(OOB))
            for k, (srd_, so, v) in enumerate(items):
                a('s_cselect_b32', sr(regs[k]), sr(so), sr(sT1))
            for k, (srd_, so, v) in enumerate(items):
                s.poll(srd_, regs[k], v)
        def h3():
            if 'noev' in EXP: return
            s.w0_spin('a', [(S_DBG, sArow, 1, vTA + 6), (S_DBG, sAcol, 1, vTA + 7)])
            s.signal([sRowCnt, sColCnt], vT4, vT4 + 1)
        def hB():
            if 'noev' in EXP: return
            w0poll([(S_DBG, sArow, vTA + 6), (S_DBG, sAcol, vTA + 7)])
            s.prebar.append(lambda: a.wait_tag('pub'))
            s.postbar.append(h3)
        if LOCAL:
            pass
        elif P('EARLYPRE', 1):
            w0poll([(S_DBG, sArow, vTA + 6), (S_DBG, sAcol, vTA + 7)])
            def h2():
                s.prebar.append(lambda: a.wait_tag('pub'))
                s.postbar.append(h3)
            s.postbar.append(h2)
        else:
            s.fq += [('UNTIL', P('PRE0', 7))] + group_flags(s.row_stats_ops()) + group_flags(s.cs_slice_ops())
            s.fq.append(lambda: (a.stamp(45), s.postbar.append(hB)))
        if typ == 'O':
            s.prebar.append(lambda: a.wait_tag('zkv'))
            s.postbar.append(s.announce_kv)
        if FUSE:
            def ann_row():
                T = vT4
                s.tid0(T, T + 1)
                a('s_mov_b32', sr(sT1), hex(OOB))
                a('s_cmp_eq_u32', sr(sJ), '0')
                a('s_cselect_b32', sr(sT0), sr(sArow), sr(sT1))
                a('buffer_store_dword', vr(T + 1), vr(T), sr(S_DBG, 4), sr(sT0), mods='offen sc1')
            s.prebar.append(lambda: a.wait_tag('zrow'))
            s.postbar.append(ann_row)
        for st in bar_after.get(-2, []):
            s.bar(st); a.stamp(16); a.lstamp(0)
        do_reads(-1, 0, 1)
        if 'nolate' not in EXP and not P('EARLYPRE', 1) and not LOCAL:
            for f in s.late_loads(): f()
        if P('SPF', 1): s.fq.insert(0, lambda: s.sparse_pf(1)); s.fq.insert(0, ('UNTIL', P('SPF1', 3)))
        events = {}
        if P('EARLYPRE', 1):
            e1, e2, e3 = (0, P('EV1', 13)), (0, P('EV2', 21)), (0, P('EV3', 23))
        else:
            e1, e2, e3 = divmod(P('EV1', 28), 32), divmod(P('EV2', 31), 32), divmod(P('EV3', 35), 32)
        if not LOCAL: events[e1] = lambda: w0poll([(S_H, sRowCnt, vTA + 6), (S_H, sColCnt, vTA + 7)])
        if not LOCAL: events[e2] = lambda: (a.stamp(46), s.w0_spin('b', [(S_H, sRowCnt, 16, vTA + 6), (S_H, sColCnt, 16, vTA + 7)]), s.set_flag(vTA + 7, vTA + 6, 0), a.stamp(47))
        if not LOCAL: events[e3] = lambda: (s.check_all('b', vTA + 7, vTA + 6, 0), s.gather_loads(), s.fq.extend([('UNTIL', P('GF', 29))] + group_flags(s.gather_finish())) if P('EARLYPRE', 1) else None)
        if FUSE:
            events[(2, 3)] = lambda: w0poll([(S_DBG, sArow, vTA + 6)])
            events[(2, 9)] = lambda: s.w0_spin('r', [(S_DBG, sArow, 1, vTA + 6)])
        if 'nopf' not in EXP and P('PFPOS', 10) >= 0: events[(2, P('PFPOS', 10))] = s.l2_prefetch
        if typ == 'E':
            events[(2, P('ED1', 16))] = lambda: w0poll([(S_H, sDoneC, vTA + 7)])
            events[(2, P('ED2', 24))] = lambda: (s.w0_spin('d', [(S_H, sDoneC, 16, vTA + 7)]), s.set_flag(vTA + 7, vTA + 6, 1))
            events[(2, P('ED3', 30))] = lambda: (s.check_all('d', vTA + 7, vTA + 6, 1), s.o_loads())
        for n, (r, kk) in enumerate(steps):
            rn = s.rounds[r]
            units = 1 if s.pair(r) else 2
            s.cur = n
            if (r, kk) in events and 'noev' not in EXP: events[(r, kk)]()
            if 'r2fine' in EXP:
                if r == 2 and kk % 4 == 0: a.stamp(50 + kk // 4)
            elif kk % 16 == 0 and kk > 0: a.stamp(24 + r * 4 + kk // 8)
            setn = r % 2
            nf = s.fillrate(r, kk, units)
            for u in range(units):
                Dd = acc(setn, u)
                C = '0' if kk == 0 else vr(Dd, 16)
                wf = vr(s.wbuf(r, kk, u), 4)
                if rn == 'KV':
                    a(MF, vr(Dd, 16), vr(xfr(kk), 4), wf, C)
                else:
                    a(MF, vr(Dd, 16), wf, vr(xfr(kk), 4), C)
                if LOCAL and u == units - 1:
                    csops = [mkop(MF16, vr(vCs + 4 * uu, 4), vr(vSel, 4), vr(s.wbuf(r, kk, uu), 4), '0' if kk < 4 else vr(vCs + 4 * uu, 4)) for uu in range(units)]
                    s.cond(sOwn, kk % 4, csops)
                do_reads(n, u, units)
                if u == units - 1 and (r == 0 or (kk % 2 == 0) or len(s.dq) > 1): s.dma_half()
                s.fill(nf)
            if LOCAL and r == 0 and kk % 2 == 1:
                ops = []
                for f in (kk - 1, kk):
                    ops.append(mkop(MF16, vr(vTA, 4), vr(vSel, 4), vr(xfr(f), 4), vr(vTA, 4)))
                for f in (kk - 1, kk):
                    ops.append(mkop(MF, vr(acc(1, 0), 16), vr(xfr(f), 4), vr(xfr(f), 4), '0' if (kk < 4 and f == kk - 1) else vr(acc(1, 0), 16)))
                s.cond(sC, (kk >> 1) & 1, ops)
            for st in bar_after.get(n, []):
                s.bar(st)
                if 'r0bars' in EXP and n in (2, 10, 18): a.lstamp({2: 1, 10: 2, 18: 3}[n])
                if r == 0 and n < 28 and 'finest' in EXP: a.stamp(50 + n // 4)
            if kk == 31:
                s.flush()
                a.stamp(4 + r)
                if 'r0bars' not in EXP: a.lstamp(1 + r)
                if LOCAL:
                    for op in s.cs_write_ops(r): a.emit(op)
                    if r == 0:
                        for op in s.diag_ops(): a.emit(op)
                s.push_epilogue(r)
        s.flush()
        if P('PFPOS', 10) < 0: s.l2_prefetch()
        a.stamp(7)
        if getattr(a, 'stamps', False):
            a.raw('  s_waitcnt vmcnt(0)')
        a.stamp(8)
        a.stamp(9, real=True)
        a.lstamp_collect(0)
        a.stamp_out(22, 's2', sr(sW), 0xA00000, vreg=0, tmpv=vT4, tmps=sT1)
        if FUSE:
            a.raw('  s_waitcnt vmcnt(0) lgkmcnt(0)')
            a.vm_retired = a.vm_issued; a.lg_retired = a.lg_issued
            a.barrier()
            s.signal([sRowCnt], vT4, vT4 + 1)
            a.raw('  s_branch L_k2f')
        else:
            a.raw('  s_endpgm')
        a.out += s.ool

    def fillrate(s, r, kk, units):
        if r == 0: return P('F0', 6)
        if units == 1: return P('FP', 6)
        return P('FQ', 4)

    def push_epilogue(s, r):
        rn = s.rounds[r]; setn = r % 2
        a = s.a
        q = s.fq
        if LOCAL:
            if r == 0: q += group_flags(s.stats_finish_write_l())
            q.append('WAITBAR')
            if r == 0:
                q += group_flags(s.stats_finish_read_l())
                if rn == 'KV': q.append('WAITBAR')
            q += s.ext_ops_local(r)
        elif r == 0:
            if not P('EARLYPRE', 1):
                q.append(('UNTIL', P('EV3', 35) + P('GD', 1)))
                q += group_flags(s.gather_finish())
            q.append('WAITBAR')
        if not LOCAL: q += s.ext_ops(r)
        if rn in ('GU0', 'GU1'):
            hreg = sHq if rn == 'GU0' else sHq2
            g = s.ep_geglu(acc(setn, 0), acc(setn, 1), 16, hreg, [0, 1024])
            q += g
        elif rn == 'P2':
            q += s.ep_geglu(acc(setn, 0), acc(setn, 0) + 8, 8, sHq2, [0])
        elif rn == 'QP':
            q += s.phi_ops(acc(setn, 0), 16, lambda i: vRS)
            q += [x for x in s.o_ops() if not (isinstance(x, str) and x == 'GAP')]
        elif rn == 'KV':
            q += s.ep_kv(setn)
            def after():
                a.stamp(10)
                a('s_lshl_b32', sr(sW0b), sr(sP), '2')
                a('s_add_u32', sr(sW0b), sr(sW0b), '192')
                s.poll(S_DBG, sW0b, vTA + 7)
                def post1():
                    a.stamp(11)
                    s.all_spin('z', S_DBG, sW0b, 1, vTA + 7)
                    s.kv_atomics()
                    a.stamp(12)
                    def arm():
                        s.prebar.append(lambda: (a.stamp(14), a.wait_tag('kvat'), a.stamp(15)))
                        s.postbar.append(lambda: (a.stamp(13), s.signal([sDoneC], vTA + 3, vTA + 4)))
                    s.postbar.append(arm)
                s.postbar.append(post1)
            q.append(after)
```

```python
from k1 import *
import k1 as K

STB = FLG + 64
CT4 = STB + 1024
assert CT4 + 1024 <= SCR
sMq, sMx = 12, 13
sLead = 19

def prologue(a):
    st = getattr(a, 'stamps', False)
    a.raw('  s_cmp_ge_u32 s2, 256')
    a.raw('  s_cbranch_scc1 L_k1_exit')
    if P('FLP', 1):
        a.raw('  s_getpc_b64 s[%d:%d]' % (sPC, sPC + 1))
        a.raw('  s_bfe_u32 s3, s2, 0x30003')
        a.raw('  s_lshl_b32 s3, s3, 13')
        a.raw('  v_lshl_add_u32 v%d, v0, 4, s3' % (vX + 127))
        a.raw('  global_load_dwordx4 v[%d:%d], v%d, s[%d:%d]' % (vX + 108, vX + 111, vX + 127, sPC, sPC + 1))
        a.vm_issued += 1
        a.pend['v%d' % (vX + 108)] = ('vm', a.vm_issued - 1); a.pend['v%d' % (vX + 109)] = ('vm', a.vm_issued - 1)
        a.pend['v%d' % (vX + 110)] = ('vm', a.vm_issued - 1); a.pend['v%d' % (vX + 111)] = ('vm', a.vm_issued - 1)
    if st:
        a.raw('  s_memtime s[96:97]')
        a.raw('  s_memrealtime s[98:99]')
    a.raw('  s_load_dwordx16 s[4:19], s[0:1], 0')
    a.raw('  s_load_dwordx4 s[20:23], s[0:1], 64')
    a.raw('  s_getpc_b64 s[%d:%d]' % (sPC, sPC + 1))
    a.label('L_k1_pc')
    L = vTA; t = vP
    a('v_and_b32', vr(L), '63', 'v0')
    a('v_lshrrev_b32', vr(t), '6', 'v0')
    a('v_lshlrev_b32', vr(vL16), '4', vr(L))
    a('v_readfirstlane_b32', sr(sW), vr(t))
    a('s_and_b32', sr(sT0), 's2', '7')
    a('s_lshr_b32', sr(sSlot), 's2', '3')
    a('s_lshr_b32', sr(sT1), sr(sT0), '1')
    a('s_and_b32', sr(sB), sr(sT0), '1')
    a('s_lshr_b32', sr(sT2), sr(sSlot), '2')
    a('s_lshl_b32', sr(sT3), sr(sB), '3')
    a('s_add_u32', sr(sJ), sr(sT2), sr(sT3))
    a('s_and_b32', sr(sTyp), sr(sJ), '1')
    a('s_lshr_b32', sr(sP), sr(sJ), '1')
    a('s_lshl_b32', sr(sI), sr(sT1), '2')
    a('s_and_b32', sr(sT2), sr(sSlot), '3')
    a('s_add_u32', sr(sI), sr(sI), sr(sT2))
    a('s_and_b32', sr(sM), sr(sW), '3')
    a('s_lshr_b32', sr(sC), sr(sW), '2')
    a('s_lshl_b32', sr(sT4), sr(sTyp), '1')
    a('s_add_u32', sr(sT4), sr(sT4), sr(sC))
    labs = ['L_k1_ED', 'L_k1_ES', 'L_k1_OD', 'L_k1_OS']
    a.raw('  s_mov_b32 s%d, %s-L_k1_pc' % (sT3, labs[0])); a.pos += 1
    for k in range(1, 4):
        a.raw('  s_mov_b32 s%d, %s-L_k1_pc' % (sT2, labs[k])); a.pos += 1
        a('s_cmp_eq_u32', sr(sT4), str(k))
        a('s_cselect_b32', sr(sT3), sr(sT2), sr(sT3))
    a('s_add_u32', sr(sPC), sr(sPC), sr(sT3))
    a('s_addc_u32', sr(sPC + 1), sr(sPC + 1), '0')
    a('s_lshl_b32', sr(sT0), sr(sM), '10')
    a('v_add_u32', vr(t + 7), sr(sT0), vr(vL16))
    if not P('FLP', 1): a('global_load_dwordx4', vr(vX + 112, 4), vr(t + 7), sr(sPC, 2))
    a('s_lshl_b32', sr(sXoff), sr(sI), '17')
    a('s_lshl_b32', sr(sM0), sr(sW), '10')
    a('s_lshl_b32', sr(sQo), sr(sP), '7')
    a('s_mul_i32', sr(sT0), sr(sP), '224')
    a('s_and_b32', sr(sT1), sr(sP), '1')
    a('s_lshl_b32', sr(sT1), sr(sT1), '1')
    a('s_add_u32', sr(sT1), sr(sT1), sr(sTyp))
    a('s_mov_b32', sr(sT2), '0'); a('s_mov_b32', sr(sT3), '64')
    a('s_cmp_eq_u32', sr(sT1), '1'); a('s_cselect_b32', sr(sT2), '128', sr(sT2)); a('s_cselect_b32', sr(sT3), '192', sr(sT3))
    a('s_cmp_eq_u32', sr(sT1), '2'); a('s_cselect_b32', sr(sT2), '96', sr(sT2)); a('s_cselect_b32', sr(sT3), '160', sr(sT3))
    a('s_cmp_eq_u32', sr(sT1), '3'); a('s_cselect_b32', sr(sT2), '32', sr(sT2)); a('s_cselect_b32', sr(sT3), '0', sr(sT3))
    a('s_add_u32', sr(sT2), sr(sT2), sr(sT0))
    a('s_add_u32', sr(sT3), sr(sT3), sr(sT0))
    a('s_lshl_b32', sr(sFo), sr(sT2), '1')
    a('s_lshl_b32', sr(sFo2), sr(sT3), '1')
    if st:
        a.raw('  v_mov_b32 v%d, v0' % (vP + 6))
    for k in range(1, 4):
        a('s_cmp_eq_u32', sr(sT4), str(k))
        a.raw('  s_cbranch_scc1 %s' % labs[k]); a.pos += 1

def d_voffs(a):
    L = vTA; t = vP
    a('v_lshrrev_b32', vr(t), '3', vr(L))
    a('v_and_b32', vr(t + 1), '7', vr(L))
    a('s_lshl_b32', sr(sT0), sr(sM), '5')
    a('v_add_u32', vr(t + 5), sr(sT0), vr(t))
    a('v_lshrrev_b32', vr(t + 2), '4', vr(L))
    a('v_xor_b32', vr(t + 2), vr(t + 1), vr(t + 2))
    a('v_lshlrev_b32', vr(t + 3), '10', vr(t + 5))
    a('v_lshl_add_u32', vr(vDc), vr(t + 2), '4', vr(t + 3))
    a('v_xor_b32', vr(vDd), '64', vr(vDc))
    a('v_add_u32', vr(vDd), '0x2000', vr(vDd))
    a('v_lshrrev_b32', vr(t + 2), '2', vr(L))
    a('v_and_b32', vr(t + 2), '4', vr(t + 2))
    a('v_xor_b32', vr(t + 1), vr(t + 1), vr(t + 2))
    a('v_lshlrev_b32', vr(t + 1), '4', vr(t + 1))
    a('s_lshl_b32', sr(sT0), sr(sM), '4')
    a('v_add_u32', vr(t + 3), sr(sT0), vr(t))
    a('v_mul_u32_u24', vr(vDa), '3584', vr(t + 3))
    a('v_add_u32', vr(vDa), vr(vDa), vr(t + 1))

def wait_kernarg(a):
    a.raw('  s_waitcnt lgkmcnt(0)')
    a.pos += 1
    if getattr(a, 'stamps', False):
        a.raw('  v_writelane_b32 v0, s96, 0')
        a.raw('  v_writelane_b32 v0, s98, 1')

class K1R(K.K1):
    def __init__(s, typ, role, a):
        K.K1.__init__(s, typ, a)
        s.role = role
        s.name = typ + role
        s.issued = 0
        s.slot = {}; s.occ = [None] * D
        s.nstep = -1
        s.last_step = {}
        for r in range(3):
            per = 8 if s.pair(r) else 4
            for kk in range(32):
                s.last_step[s.wst[(r, kk // per)]] = r * 32 + kk
                if r == 0: s.last_step[s.xst[kk // 4]] = kk

    def dma_list(s, idx):
        kind, t = s.stages[idx]
        L = []
        if kind == 'X':
            for e in range(4): L.append((sMx, e * 1024, vDc + (e & 1), S_X, sXoff, t * 128 + (e >> 1) * 16 * 1024))
        elif kind in ('GU0', 'GU1'):
            fo = sFo if kind == 'GU0' else sFo2
            for mat in range(2):
                for e in range(2): L.append((sMq, mat * 8192 + e * 1024, vDa, S_G if mat == 0 else S_U, fo, t * 64 * 3584 + e * 8 * 3584))
        elif kind == 'KV':
            for mat in range(2):
                for e in range(2): L.append((sMq, mat * 8192 + e * 1024, vDb, S_Q, sQo, t * 64 * 3072 + e * 8 * 3072 + 1024 * (mat + 1)))
        elif kind == 'QP':
            for e in range(4): L.append((sMx, e * 1024, vDb, S_Q, sQo, t * 128 * 3072 + e * 8 * 3072))
        elif kind == 'P2':
            for mat in range(2):
                for e in range(2): L.append((sMq, mat * 8192 + e * 1024, vDc + mat, S_G if mat == 0 else S_U, sFo2, t * 128 * 3584 + e * 16 * 3584))
        return L

    def dma_one(s, idx, j):
        if s.role != 'D': return
        a = s.a
        if s.stages[idx][0] == 'P2' and not s.p2ready: s.p2_voffs()
        m0reg, m0imm, voff, srd_, soff, imm = s.dma_list(idx)[j]
        if 'nodma' in EXP and idx > 3:
            if j == 3: a.tags[('dma', idx)] = ('vm', -1)
            return
        a('s_add_u32', 'm0', sr(m0reg), str(s.slot[idx] * SLOT + m0imm))
        a('s_add_u32', sr(sT0), sr(soff), str(imm))
        a('buffer_load_dwordx4', vr(voff), sr(srd_, 4), sr(sT0), mods='offen lds', tag=('dma', idx) if j == 3 else None)

    def p2_voffs(s):
        a = s.a
        a('v_lshrrev_b32', vr(vDc), '6', vr(vL16))
        a('s_lshl_b32', sr(sT0), sr(sM), '5')
        a('v_add_u32', vr(vDc), sr(sT0), vr(vDc))
        a('v_mul_u32_u24', vr(vDc), '3584', vr(vDc))
        a('v_and_b32', vr(vDd), '48', vr(vL16))
        a('v_add_u32', vr(vDc), vr(vDc), vr(vDd))
        a('v_xor_b32', vr(vDd), '32', vr(vDc))
        s.p2ready = True

    def issue_more(s, now=False, ahead=None):
        ah = K.AHEAD if ahead is None else ahead
        while s.issued < len(s.stages) and s.issued - s.landed < ah and s.alloc(s.issued):
            if now:
                for j in range(4): s.dma_one(s.issued, j)
            else:
                s.dq.append(s.issued)
            s.issued += 1

    def dma_half(s):
        if not s.dq: return
        idx = s.dq[0]
        s.dma_one(idx, s.dqh)
        s.dqh += 1
        if s.dqh == 4:
            s.dq.pop(0); s.dqh = 0

    def dma_flush(s, upto):
        while s.dq and s.dq[0] <= upto: s.dma_half()

    def bar(s, idx):
        a = s.a
        if idx is not None:
            s.dma_flush(idx)
            if s.role == 'D' and 'nowait' not in EXP: a.wait_tag(('dma', idx))
        pb, s.prebar = s.prebar, []
        for f in pb: f()
        if a.last_dsw >= 0: a.need([('lg', a.last_dsw)])
        nfree = s.freed
        while nfree < len(s.stages) and s.last_step[nfree] <= s.nstep: nfree += 1
        a.barrier()
        s.freed = nfree
        if idx is not None: s.landed = idx + 1
        s.issue_more()
        if s.fq and isinstance(s.fq[0], str) and s.fq[0] == 'WAITBAR': s.fq.pop(0)
        pb, s.postbar = s.postbar, []
        for f in pb: f()

    def lead_off(s, dst, src):
        a = s.a
        a('s_cmp_eq_u32', sr(sW), '4')
        a('s_mov_b32', sr(sT1), hex(OOB))
        a('s_cselect_b32', sr(dst), sr(src), sr(sT1))

    def lane0(s, t0, t1):
        a = s.a
        a('s_cmp_eq_u32', sr(sW), '4')
        a('s_cselect_b32', sr(sT1), '0', '16')
        a('v_add_u32', vr(t0), sr(sT1), vr(vL16))
        a('v_mov_b32', vr(t1), hex(OOB))
        a('v_cmp_ne_u32', 'vcc', '0', vr(t0))
        a('v_cndmask_b32', vr(t0), vr(t0), vr(t1))
        a('v_mov_b32', vr(t1), '1')

    def signal(s, soffs, t0, t1):
        a = s.a
        s.lane0(t0, t1)
        for so in soffs:
            a('buffer_atomic_add', vr(t1), vr(t0), sr(S_H, 4), sr(so), mods='offen')

    def lead_spin(s, name, checks):
        a = s.a
        regs = [sT2, sT3]
        for k, (_, _, _, v) in enumerate(checks): a('v_readfirstlane_b32', sr(regs[k]), vr(v))
        if 'nospin' in EXP: return
        L = 'L_%s%s' % (name, s.name)
        a('s_cmp_eq_u32', sr(sW), '4')
        a.raw('  s_cbranch_scc0 %s_ok' % L)
        a.raw('  s_mov_b32 %s, 0' % sr(sSpin))
        a.label(L + '_chk')
        for k, (_, _, tgt, _) in enumerate(checks):
            a.raw('  s_cmp_ge_u32 %s, %d' % (sr(regs[k]), tgt))
            a.raw('  s_cbranch_scc0 %s_spin' % L)
        a.raw('  s_branch %s_ok' % L)
        a.label(L + '_spin')
        a.raw('  s_sleep 4')
        for k, (srd_, soff, _, v) in enumerate(checks):
            a.raw('  buffer_load_dword %s, off, %s, %s sc1' % (vr(v), sr(srd_, 4), sr(soff)))
        a.raw('  s_waitcnt vmcnt(0)')
        for k, (_, _, _, v) in enumerate(checks):
            a.raw('  v_readfirstlane_b32 %s, %s' % (sr(regs[k]), vr(v)))
        a.raw('  s_add_u32 %s, %s, 1' % (sr(sSpin), sr(sSpin)))
        a.raw('  s_cmp_lt_u32 %s, 0x100000' % sr(sSpin))
        a.raw('  s_cbranch_scc1 %s_chk' % L)
        a.label(L + '_ok')
        a.pos += 3
        a.nop(2)

    def lead_poll(s, items):
        regs = [sW0a, sW0b]
        for k, (srd_, so, v) in enumerate(items): s.lead_off(regs[k], so)
        for k, (srd_, so, v) in enumerate(items): s.poll(srd_, regs[k], v)

    def set_flag(s, vreg, vtmp, flagidx):
        a = s.a
        a('s_cmp_eq_u32', sr(sW), '4')
        a('s_mov_b32', sr(sT3), hex(DUMMY))
        a('s_cselect_b32', sr(sT3), hex(FLG + 4 * flagidx), sr(sT3))
        a('v_mov_b32', vr(vtmp), sr(sT3))
        a('v_mov_b32', vr(vreg), '1')
        a('ds_write_b32', vr(vtmp), vr(vreg))

    def check_all(s, name, vreg, vtmp, flagidx):
        a = s.a
        a('v_mov_b32', vr(vtmp), hex(FLG + 4 * flagidx))
        a('ds_read_b32', vr(vreg), vr(vtmp))
        a('v_readfirstlane_b32', sr(sT2), vr(vreg))
        if 'nospin' in EXP: return
        L = 'L_%s%s' % (name, s.name)
        a('s_cmp_lg_u32', sr(sT2), '0')
        a.raw('  s_cbranch_scc1 %s_ok2' % L)
        a.raw('  s_mov_b32 %s, 0' % sr(sSpin))
        a.label(L + '_lds')
        a.raw('  s_sleep 1')
        a.raw('  ds_read_b32 %s, %s' % (vr(vreg), vr(vtmp)))
        a.raw('  s_waitcnt lgkmcnt(0)')
        a.raw('  v_readfirstlane_b32 %s, %s' % (sr(sT2), vr(vreg)))
        a.raw('  s_add_u32 %s, %s, 1' % (sr(sSpin), sr(sSpin)))
        a.raw('  s_cmp_ge_u32 %s, 0x1000000' % sr(sSpin))
        a.raw('  s_cbranch_scc1 %s_ok2' % L)
        a.raw('  s_cmp_eq_u32 %s, 0' % sr(sT2))
        a.raw('  s_cbranch_scc1 %s_lds' % L)
        a.label(L + '_ok2')
        a.pos += 2
        a.nop(2)

    def common_setup(s):
        a = s.a; typ = s.typ
        a('s_lshl_b32', sr(sAcc), sr(sP), '13')
        a('s_add_u32', sr(sAcc), sr(sAcc), hex(ACC_OFF))
        a('s_lshl_b32', sr(sT0), sr(sI), '2')
        a('s_add_u32', sr(sT0), sr(sT0), sr(sM))
        a('s_mul_i32', sr(sHb), sr(sT0), str(144 * 1024))
        a('s_mov_b32', sr(sMask), '0xffff'); a('s_mov_b32', sr(sMask + 1), '0xffff')
        a('s_lshl_b32', sr(sT0), sr(sC), '12')
        a('s_add_u32', sr(sAccC), sr(sAcc), sr(sT0))
        a('s_lshl_b32', sr(sT0), sr(sC), '7')
        a('s_add_u32', sr(sCT), sr(sT0), hex(CTB))
        a('s_lshl_b32', sr(sT0), sr(sFo), '5')
        a('s_add_u32', sr(sHq), sr(sHb), sr(sT0))
        a('s_lshl_b32', sr(sT1), sr(sC), '11')
        a('s_add_u32', sr(sHq), sr(sHq), sr(sT1))
        a('s_lshl_b32', sr(sT0), sr(sFo2), '5')
        a('s_add_u32', sr(sHq2), sr(sHb), sr(sT0))
        if typ == 'E':
            a('s_add_u32', sr(sHq2), sr(sHq2), sr(sT1))
            a('s_lshl_b32', sr(sT0), sr(sP), '12')
            a('s_add_u32', sr(sHo), sr(sHb), sr(sT0))
            a('s_add_u32', sr(sHo), sr(sHo), sr(sT1))
            a('s_add_u32', sr(sHo), sr(sHo), str(112 * 1024))
        else:
            a('s_lshl_b32', sr(sT1), sr(sC), '10')
            a('s_add_u32', sr(sHq2), sr(sHq2), sr(sT1))
            a('v_mov_b32', vr(vOnes), '0x3f803f80')
        a('v_mov_b32', vr(vXE + 1), '0'); a('v_mov_b32', vr(vWE + 1), '0')
        s.lq_bases('Q', [vT4, vT4 + 1, vT4 + 2, vT4 + 3])
        t = vT4
        a('v_bfe_u32', vr(t), vr(vL16), '4', '5')
        a('s_lshl_b32', sr(sT0), sr(sM), '5')
        a('v_add_u32', vr(t + 1), sr(sT0), vr(t))
        a('v_lshlrev_b32', vr(t + 1), '7', vr(t + 1))
        a('v_bfe_u32', vr(t + 2), vr(vL16), '5', '3')
        a('v_lshrrev_b32', vr(t + 3), '9', vr(vL16))
        a('v_xor_b32', vr(t + 2), vr(t + 2), vr(t + 3))
        for kq in range(4):
            a('v_xor_b32', vr(t + 3), str(2 * kq), vr(t + 2))
            a('v_lshl_add_u32', vr(vP + kq), vr(t + 3), '4', vr(t + 1))
            a('v_add_u32', vr(vP + 4 + kq), '0x10000', vr(vP + kq))

    def more_code_pf(s, nk):
        a = s.a
        if P('FLP', 1): return
        a('s_lshl_b32', sr(sT0), sr(sM), '10')
        a('v_add_u32', vr(vTA + 6), sr(sT0), vr(vL16))
        for i in range(nk):
            a('v_add_u32', vr(vTA + 6), '0x1000', vr(vTA + 6))
            a('global_load_dwordx4', vr(vX + 116 + 4 * (i % 3), 4), vr(vTA + 6), sr(sPC, 2))

    def setup_D(s):
        a = s.a
        d_voffs(a)
        t = vP
        if s.typ == 'E':
            a('v_mul_u32_u24', vr(vDb), '3072', vr(t + 5))
        else:
            a('v_mul_u32_u24', vr(vDb), '3072', vr(t + 3))
        a('v_add_u32', vr(vDb), vr(vDb), vr(t + 1))
        wait_kernarg(a)
        srd(a, S_X, 4, 2048 * 1024)
        if s.typ == 'E':
            srd(a, S_G, 12, 512 * 3584); srd(a, S_U, 14, 512 * 3584)
        else:
            srd(a, S_Q, 6, 512 * 3072)
        if s.typ == 'O': srd(a, S_G, 12, 512 * 3584)
        a('s_lshl_b32', sr(sMq), sr(sM), '11')
        a('s_lshl_b32', sr(sMx), sr(sM), '12')
        if 'startup' in EXP: a.lstamp(0)
        s.issue_more(now=True, ahead=2)
        if 'startup' in EXP: a.lstamp(1)
        if s.typ == 'E': srd(a, S_Q, 6, 512 * 3072)
        else: srd(a, S_U, 14, 512 * 3584)
        srd(a, S_H, 22, WS_BYTES)
        s.common_setup()
        s.issue_more(now=True, ahead=4)
        if 'startup' in EXP: a.lstamp(2)
        s.fq.append(lambda: s.more_code_pf(3))

    def setup_S(s):
        a = s.a; typ = s.typ
        t = vTA + 1
        L = vTA
        a('s_lshl_b32', sr(sT0), sr(sI), '7')
        a('s_lshl_b32', sr(sT1), sr(sJ), '3')
        a('s_add_u32', sr(sT0), sr(sT0), sr(sT1))
        a('s_lshl_b32', sr(sT1), sr(sM), '1')
        a('s_add_u32', sr(sT5), sr(sT0), sr(sT1))
        a('s_lshl_b32', sr(sF0), sr(sT5), '10')
        if typ == 'E':
            cands = [(S_G, 12, sFo, 0), (S_U, 14, sFo, 0), (S_Q, 6, sQo, 0), (S_G, 12, sFo2, 0)]
        else:
            cands = [(S_Q, 6, sQo, 1024), (S_Q, 6, sQo, 2048), (S_G, 12, sFo, 0), (S_U, 14, sFo, 0)]
        rs = lambda c: '3072' if c[0] == S_Q else '3584'
        a('s_add_u32', sr(sT7), sr(cands[0][2]), str(cands[0][3]))
        a('s_mov_b32', sr(sT8), rs(cands[0]))
        for sg in range(1, 4):
            c = cands[sg]
            a('s_add_u32', sr(sT1), sr(c[2]), str(c[3]))
            a('s_cmp_eq_u32', sr(sM), str(sg))
            a('s_cselect_b32', sr(sT7), sr(sT1), sr(sT7))
            a('s_cselect_b32', sr(sT8), rs(c), sr(sT8))
        a('v_lshrrev_b32', vr(t + 1), '3', vr(L))
        a('v_and_b32', vr(t + 2), '7', vr(L))
        a('v_lshrrev_b32', vr(t + 3), '2', vr(L))
        a('v_and_b32', vr(t + 3), '4', vr(t + 3))
        a('v_xor_b32', vr(t + 2), vr(t + 2), vr(t + 3))
        a('v_lshlrev_b32', vr(t + 2), '4', vr(t + 2))
        a('v_mul_lo_u32', vr(t), vr(t + 1), sr(sT8))
        a('v_add_u32', vr(t), vr(t), vr(t + 2))
        a('s_lshl_b32', sr(sT0), sr(sI), '5')
        a('s_mul_i32', sr(sT0), sr(sT0), sr(sT8))
        a('s_add_u32', sr(sT7), sr(sT7), sr(sT0))
        a('s_lshl_b32', sr(sT8), sr(sT8), '3')
        a('s_lshl_b32', sr(sT0), sr(sM), '12')
        a('s_add_u32', sr(sHq), sr(sT0), hex(SCR))
        if typ == 'E':
            a('v_mul_u32_u24', vr(t + 3), '3584', vr(t + 1))
            a('v_add_u32', vr(t + 3), vr(t + 3), vr(t + 2))
            voffs = [t + 3] * 4; rowstep = [0, 8, 16, 24]; srds = [S_U] * 4
        else:
            a('v_lshrrev_b32', vr(t + 3), '2', vr(L))
            a('v_mul_u32_u24', vr(t + 3), '3584', vr(t + 3))
            a('v_and_b32', vr(t + 4), '48', vr(vL16))
            a('v_add_u32', vr(t + 3), vr(t + 3), vr(t + 4))
            a('v_xor_b32', vr(t + 4), '32', vr(t + 3))
            voffs = [t + 3, t + 3, t + 4, t + 4]; rowstep = [0, 16, 0, 16]; srds = [S_G, S_G, S_U, S_U]
        a('s_mul_i32', sr(sT0), sr(sI), str(32 * 3584))
        a('s_add_u32', sr(sT2), sr(sT0), sr(sFo2))
        a('s_cmp_eq_u32', sr(sM), '0')
        a('s_cselect_b32', sr(sT2), sr(sT2), hex(OOB - 0x100000))
        a('s_mov_b32', sr(sT1), hex(SCR + 5 * 4096))
        a('s_cselect_b32', sr(sT3), hex(SCR + 4 * 4096), sr(sT1))
        wait_kernarg(a)
        srd(a, S_X, 4, 2048 * 1024)
        srd(a, S_Q, 6, 512 * 3072); srd(a, S_G, 12, 512 * 3584); srd(a, S_U, 14, 512 * 3584)
        a('s_mov_b32', sr(sScr), sr(sHq))
        a('s_mov_b32', sr(sO3), sr(sT3))
        a('s_mov_b32', sr(sO2), sr(sT2))
        for k in range(3): a('s_mov_b32', sr(S_T0 + k), sr(cands[0][0] + k))
        for sg in range(1, 4):
            a('s_cmp_eq_u32', sr(sM), str(sg))
            for k in range(3): a('s_cselect_b32', sr(S_T0 + k), sr(cands[sg][0] + k), sr(S_T0 + k))
        a('s_mov_b32', sr(S_T0 + 3), '0x20000')
        def pre_loads():
            a('buffer_load_dwordx4', vr(acc(1, 0), 4), vr(vL16), sr(S_X, 4), sr(sF0), mods='offen')
            a('buffer_load_dwordx4', vr(acc(1, 0) + 4, 4), vr(vL16), sr(S_X, 4), sr(sF0), mods='offen offset:1024')
            for e in range(4):
                a('s_add_u32', 'm0', sr(sScr), str(e * 1024))
                if e > 0: a('s_add_u32', sr(sT7), sr(sT7), sr(sT8))
                else: a('s_nop', '0')
                a('buffer_load_dwordx4', vr(t), sr(S_T0, 4), sr(sT7), mods='offen lds', tag='slice1' if e == 3 else None)
            for e in range(4):
                a('s_add_u32', 'm0', sr(sO3), str(e * 1024))
                a('s_add_u32', sr(sT0), sr(sO2), str(rowstep[e] * 3584))
                a('buffer_load_dwordx4', vr(voffs[e]), sr(srds[e], 4), sr(sT0), mods='offen lds', tag='slice2' if e == 3 else None)
        s.pre_loads = pre_loads
        if P('SPF', 1): s.spf_phase(0)
        if 'startup' in EXP: a.lstamp(0)
        s.issue_more(now=True, ahead=2)
        srd(a, S_H, 22, WS_BYTES)
        a('s_lshl_b32', sr(sRowCnt), sr(sI), '8')
        a('s_add_u32', sr(sRowCnt), sr(sRowCnt), hex(ARENA))
        a('s_lshl_b32', sr(sColCnt), sr(sJ), '8')
        a('s_add_u32', sr(sColCnt), sr(sColCnt), hex(ARENA + 16 * 256))
        a('s_lshl_b32', sr(sDoneC), sr(sP), '8')
        a('s_add_u32', sr(sDoneC), sr(sDoneC), hex(ARENA + 32 * 256))
        a('s_lshl_b32', sr(sAcc), sr(sP), '13')
        a('s_add_u32', sr(sAcc), sr(sAcc), hex(ACC_OFF))
        Z = vT4
        for i in range(4): a('v_mov_b32', vr(Z + i), '0')
        s.lane0(vTA + 6, vTA + 7)
        a('s_mov_b32', sr(sT4), hex(OOB))
        a('s_cmp_eq_u32', sr(sJ), '0')
        a('s_cselect_b32', sr(sT0), sr(sRowCnt), sr(sT4))
        a('buffer_store_dword', vr(Z), vr(vTA + 6), sr(S_H, 4), sr(sT0), mods='offen sc1')
        a('s_cmp_eq_u32', sr(sI), '0')
        a('s_cselect_b32', sr(sT0), sr(sColCnt), sr(sT4))
        a('s_cselect_b32', sr(sT2), sr(sDoneC), sr(sT4))
        a('s_cselect_b32', sr(sT3), sr(sAcc), sr(sT4))
        a('buffer_store_dword', vr(Z), vr(vTA + 6), sr(S_H, 4), sr(sT0), mods='offen sc1', tag='zrc')
        if typ == 'O':
            a('buffer_store_dword', vr(Z), vr(vTA + 6), sr(S_H, 4), sr(sT2), mods='offen sc1')
            a('s_min_u32', sr(sT3), sr(sT3), hex(OOB - 0x10000))
            a('s_lshl_b32', sr(sT0), sr(sM), '11')
            a('s_add_u32', sr(sT3), sr(sT3), sr(sT0))
            a('buffer_store_dwordx4', vr(Z, 4), vr(vL16), sr(S_H, 4), sr(sT3), mods='offen sc1')
            a('buffer_store_dwordx4', vr(Z, 4), vr(vL16), sr(S_H, 4), sr(sT3), mods='offen offset:1024 sc1', tag='zkv')
        if 'startup' in EXP: a.lstamp(1)
        srd(a, S_DBG, 20, 256)
        a('s_lshl_b32', sr(sArow), sr(sI), '2')
        a('s_lshl_b32', sr(sAcol), sr(sJ), '2')
        a('s_add_u32', sr(sAcol), sr(sAcol), '128')
        s.common_setup()
        T = vT4
        a('v_mov_b32', vr(T), hex(FLG))
        a('v_mov_b32', vr(T + 2), '0'); a('v_mov_b32', vr(T + 3), '0')
        a('ds_write_b64', vr(T), vr(T + 2, 2))
        a('ds_write_b32', vr(T), vr(T + 2), mods='offset:8')
        s.issue_more(now=True, ahead=4)
        if 'startup' in EXP: a.lstamp(2)
        def late2():
            a.wait_tag('zrc')
            s.lane0(T, T + 1)
            a('s_mov_b32', sr(sT1), hex(OOB))
            a('s_cmp_eq_u32', sr(sJ), '0')
            a('s_cselect_b32', sr(sT0), sr(sArow), sr(sT1))
            a('buffer_store_dword', vr(T + 1), vr(T), sr(S_DBG, 4), sr(sT0), mods='offen sc1')
            a('s_cmp_eq_u32', sr(sI), '0')
            a('s_cselect_b32', sr(sT0), sr(sAcol), sr(sT1))
            a('buffer_store_dword', vr(T + 1), vr(T), sr(S_DBG, 4), sr(sT0), mods='offen sc1')
        s.late2 = late2

    def spf(s, entries, dst):
        a = s.a
        T = S_T1
        t0, t1 = vG, vG + 1
        real = [e for e in entries if e is not None and e[0] != 'x']
        first = real[0]
        for k in range(3): a('s_mov_b32', sr(T + k), sr(first[0] + k))
        a('s_add_u32', sr(sT3), sr(first[1]), str(first[2]))
        a('s_mov_b32', sr(sT1), str(first[3]))
        a('s_mov_b32', sr(sT4), str(first[4]))
        for m, e in enumerate(entries):
            if e is None:
                a('s_cmp_eq_u32', sr(sM), str(m))
                a('s_cselect_b32', sr(T + 2), '0', sr(T + 2))
            elif e[0] == 'x':
                a('s_cmp_eq_u32', sr(sM), str(m))
                for k in range(3): a('s_cselect_b32', sr(T + k), sr(S_X + k), sr(T + k))
                a('s_cselect_b32', sr(sT4), str(e[1]), sr(sT4))
            elif e is not first:
                a('s_add_u32', sr(sT0), sr(e[1]), str(e[2]))
                a('s_cmp_eq_u32', sr(sM), str(m))
                for k in range(3): a('s_cselect_b32', sr(T + k), sr(e[0] + k), sr(T + k))
                a('s_cselect_b32', sr(sT3), sr(sT0), sr(sT3))
                a('s_cselect_b32', sr(sT1), str(e[3]), sr(sT1))
                a('s_cselect_b32', sr(sT4), str(e[4]), sr(sT4))
        a('s_mov_b32', sr(T + 3), '0x20000')
        a('s_and_b32', sr(sT0), sr(sI), '3')
        a('s_lshl_b32', sr(sT0), sr(sT0), '1')
        a('s_add_u32', sr(sT0), sr(sT0), sr(sT4))
        a('s_lshl_b32', sr(sT0), sr(sT0), '6')
        a('v_lshrrev_b32', vr(t0), '4', vr(vL16))
        a('v_add_u32', vr(t0), sr(sT0), vr(t0))
        a('v_mul_lo_u32', vr(t0), vr(t0), sr(sT1))
        a('v_add_u32', vr(t0), sr(sT3), vr(t0))
        xs = [m for m, e in enumerate(entries) if e is not None and e[0] == 'x']
        if xs:
            a('s_and_b32', sr(sT0), sr(sJ), '7')
            a('s_lshl_b32', sr(sT0), sr(sT0), '1')
            a('s_add_u32', sr(sT0), sr(sT0), sr(sT4))
            a('s_lshl_b32', sr(sT0), sr(sT0), '3')
            a('v_lshrrev_b32', vr(t1), '7', vr(vL16))
            a('v_add_u32', vr(t1), sr(sT0), vr(t1))
            a('v_lshlrev_b32', vr(t1), '10', vr(t1))
            a('v_add_u32', vr(t1), sr(sXoff), vr(t1))
            a('v_bfe_u32', vr(vG + 2), vr(vL16), '4', '3')
            a('v_lshl_add_u32', vr(t1), vr(vG + 2), '7', vr(t1))
            a('s_cmp_le_u32', sr(sM), str(max(xs)))
            a('s_cselect_b64', 'vcc', '-1', '0')
            a('v_cndmask_b32', vr(t0), vr(t0), vr(t1))
        a('buffer_load_dword', vr(dst), vr(t0), sr(T, 4), '0', mods='offen')

    def spf_phase(s, phase):
        typ = s.typ
        if typ == 'E':
            mats = {'GU0': [(S_G, sFo, 0, 3584), (S_U, sFo, 0, 3584)], 'GU1': [(S_G, sFo2, 0, 3584), (S_U, sFo2, 0, 3584)], 'QP': [(S_Q, sQo, 0, 3072), None]}
        else:
            mats = {'KV': [(S_Q, sQo, 1024, 3072), (S_Q, sQo, 2048, 3072)], 'P2': [(S_G, sFo2, 0, 3584), (S_U, sFo2, 0, 3584)], 'GU0': [(S_G, sFo, 0, 3584), (S_U, sFo, 0, 3584)]}
        R = [mats[r] for r in s.rounds]
        e = lambda mt, h: None if mt is None else mt + (h,)
        if phase == 0:
            s.spf([('x', 0), ('x', 1), e(R[0][0], 0), e(R[0][0], 1)], vX + 120)
            s.spf([e(R[0][1], 0), e(R[0][1], 1), e(R[1][0], 0), e(R[1][0], 1)], vX + 121)
        else:
            s.spf([e(R[1][1], 0), e(R[1][1], 1), e(R[2][0], 0), e(R[2][0], 1)], vX + 122)
            if R[2][1] is not None: s.spf([e(R[2][1], 0), e(R[2][1], 1), None, None], vX + 123)

    def announce_kv(s):
        a = s.a
        T = vT4
        s.lane0(T, T + 1)
        a('s_lshl_b32', sr(sT0), sr(sP), '2')
        a('s_add_u32', sr(sT0), sr(sT0), '192')
        a('s_cmp_eq_u32', sr(sI), '0')
        a('s_cselect_b32', sr(sT0), sr(sT0), hex(OOB))
        a('buffer_store_dword', vr(T + 1), vr(T), sr(S_DBG, 4), sr(sT0), mods='offen sc1')

    def row_stats_ops(s):
        ops = []
        a = lambda mn, *x, **k: ops.append(mkop(mn, *x, **k))
        B = acc(1, 0)
        Xs = [B, B + 4]; As = [B + 8, B + 10]; ones = B + 12
        a('v_mov_b32', vr(ones), '0x3f803f80')
        for X, A in zip(Xs, As):
            a('v_dot2_f32_bf16', vr(A), vr(X), vr(ones), '0')
            a('v_dot2_f32_bf16', vr(A + 1), vr(X), vr(X), '0')
        for i in range(1, 4):
            for X, A in zip(Xs, As):
                a('v_dot2c_f32_bf16', vr(A), vr(X + i), vr(ones))
                a('v_dot2c_f32_bf16', vr(A + 1), vr(X + i), vr(X + i))
        R4 = [As[0], As[0] + 1, As[1], As[1] + 1]
        for dpp in ('row_shr:1', 'row_shr:2', 'row_shr:4', 'row_shr:8'):
            for r in R4: a('v_add_f32_dpp', vr(r), vr(r), vr(r), mods='%s row_mask:0xf bank_mask:0xf bound_ctrl:0' % dpp)
        for dpp, rm in (('row_bcast:15', '0xa'), ('row_bcast:31', '0xc')):
            for r in R4: a('v_add_f32_dpp', vr(r), vr(r), vr(r), mods='%s row_mask:%s bank_mask:0xf' % (dpp, rm))
        def both(f):
            for A in As: f(A)
        def rbf(r):
            a('v_cvt_pk_bf16_f32', vr(r), vr(r), vr(r)); a('v_lshlrev_b32', vr(r), '16', vr(r))
        both(lambda A: a('v_mul_f32', vr(A), lit(1.0 / 512), vr(A)))
        both(lambda A: a('v_mul_f32', vr(A + 1), lit(1.0 / 512), vr(A + 1)))
        both(lambda A: a('v_fma_f32', vr(A + 1), '-' + vr(A), vr(A), vr(A + 1)))
        both(lambda A: a('v_max_f32', vr(A + 1), '0', vr(A + 1)))
        both(lambda A: rbf(A)); both(lambda A: rbf(A + 1))
        both(lambda A: a('v_add_f32', vr(A + 1), lit(1e-5), vr(A + 1)))
        both(lambda A: rbf(A + 1))
        both(lambda A: a('v_sqrt_f32', vr(A + 1), vr(A + 1)))
        both(lambda A: rbf(A + 1))
        O = B + 13
        a('v_mov_b32', vr(O), hex(OOB))
        a('v_mov_b32', vr(O + 1), '0')
        a('v_cmp_eq_u32', 'vcc', '1008', vr(vL16))
        a('v_cndmask_b32', vr(O), vr(O), vr(O + 1))
        a('s_lshl_b32', sr(sF0), sr(sT5), '3')
        a('s_add_u32', sr(sF0), sr(sF0), hex(STAT_OFF))
        a('buffer_store_dwordx2', vr(As[0], 2), vr(O), sr(S_H, 4), sr(sF0), mods='offen sc1')
        a('buffer_store_dwordx2', vr(As[1], 2), vr(O), sr(S_H, 4), sr(sF0), mods='offen offset:8 sc1')
        return ops

    def cs_slice_ops(s, npass):
        ops = []
        typ = s.typ
        a = lambda mn, *x, **k: ops.append(mkop(mn, *x, **k))
        t = acc(1, 0) + 8; P = acc(1, 0)
        p2 = (npass == 2 and typ == 'O')
        if npass == 1:
            a('v_bfe_u32', vr(t), vr(vL16), '4', '4')
            a('v_bfe_u32', vr(t + 1), vr(vL16), '8', '1')
            a('v_cmp_eq_u32', 'vcc', vr(t), vr(t + 1))
            a('v_mov_b32', vr(t + 2), '0x3f803f80')
            a('v_mov_b32', vr(t + 3), '0')
            for i in range(4): a('v_cndmask_b32', vr(vSel + i), vr(t + 3), vr(t + 2))
        a('v_lshrrev_b32', vr(P), '9', vr(vL16))
        a('v_lshlrev_b32', vr(P), '3', vr(P))
        a('v_bfe_u32', vr(P + 1), vr(vL16), '6', '2')
        a('v_add_u32', vr(P), vr(P), vr(P + 1))
        a('v_bfe_u32', vr(P + 1), vr(vL16), '8', '1')
        a('v_bfe_u32', vr(P + 2), vr(vL16), '5', '1')
        a('v_bfe_u32', vr(P + 3), vr(vL16), '4', '1')
        if not p2:
            a('v_lshl_add_u32', vr(P + 4), vr(P + 1), '1', vr(P + 2))
            a('v_bfe_u32', vr(P + 5), vr(vL16), '7', '1')
            a('v_lshlrev_b32', vr(P + 5), '2', vr(P + 5))
            a('v_xor_b32', vr(P + 4), vr(P + 4), vr(P + 5))
            a('v_lshlrev_b32', vr(P + 4), '4', vr(P + 4))
            a('v_lshl_add_u32', vr(P + 4), vr(P), '7', vr(P + 4))
            a('v_lshl_add_u32', vr(P + 4), vr(P + 3), '3', vr(P + 4))
            a('v_add_u32', vr(P + 4), sr(sScr if npass == 1 else sO3), vr(P + 4))
            a('v_xor_b32', vr(P + 5), '64', vr(P + 4))
            stride = 512
        else:
            a('v_lshlrev_b32', vr(P + 4), '1', vr(P + 1))
            a('v_xor_b32', vr(P + 4), vr(P + 4), vr(P + 2))
            a('v_lshlrev_b32', vr(P + 4), '4', vr(P + 4))
            a('v_lshl_add_u32', vr(P + 4), vr(P), '6', vr(P + 4))
            a('v_lshl_add_u32', vr(P + 4), vr(P + 3), '3', vr(P + 4))
            a('v_lshl_add_u32', vr(P + 4), vr(P + 1), '11', vr(P + 4))
            a('v_add_u32', vr(P + 4), sr(sO3), vr(P + 4))
            a('v_xor_b32', vr(P + 5), '32', vr(P + 4))
            stride = 256
        F = acc(1, 1)
        ops.append(lambda: s.a.wait_tag('slice%d' % npass))
        for cp in range(2):
            for k in range(4):
                ks, q = k // 2, k % 2
                a('ds_read_b64_tr_b16', vr(F + (cp * 2 + ks) * 4 + 2 * q, 2), vr(P + 4 + cp), mods='offset:%d' % ((ks * 4 + q) * stride))
        ops += [None] * 6
        Da = vCs; Db = vCs + 4
        a(MF16, vr(Da, 4), vr(vSel, 4), vr(F, 4), '0')
        a(MF16, vr(Db, 4), vr(vSel, 4), vr(F + 8, 4), '0')
        a(MF16, vr(Da, 4), vr(vSel, 4), vr(F + 4, 4), vr(Da, 4))
        a(MF16, vr(Db, 4), vr(vSel, 4), vr(F + 12, 4), vr(Db, 4))
        ops += [None] * 8
        a('v_permlane16_swap_b32', vr(Da), vr(Da + 1))
        a('v_permlane16_swap_b32', vr(Db), vr(Db + 1))
        ops += [None] * 2
        a('v_permlane32_swap_b32', vr(Da), vr(Db))
        def st():
            aa = s.a
            aa('s_lshl_b32', sr(sF0), sr(sJ), '4')
            aa('s_add_u32', sr(sF0), sr(sF0), sr(sI))
            aa('s_mul_i32', sr(sF0), sr(sF0), '1280')
            aa('s_add_u32', sr(sF0), sr(sF0), hex(CSP_OFF))
            if npass == 1:
                aa('s_lshl_b32', sr(sF1), sr(sM), '8')
                aa('s_add_u32', sr(sF0), sr(sF0), sr(sF1))
            else:
                aa('s_add_u32', sr(sF0), sr(sF0), '1024')
                aa('s_cmp_eq_u32', sr(sM), '0')
                aa('s_cselect_b32', sr(sF0), sr(sF0), hex(OOB - 0x10000))
            aa('v_lshrrev_b32', vr(P), '2', vr(vL16))
            aa('buffer_store_dword', vr(Da), vr(P), sr(S_H, 4), sr(sF0), mods='offen sc1', tag='pub')
        ops.append(st)
        return ops

    def gather_loads(s):
        a = s.a
        T = vTA
        a('v_and_b32', vr(T + 4), '0x1f0', vr(vL16))
        a('v_lshrrev_b32', vr(T + 4), '1', vr(T + 4))
        a('s_lshl_b32', sr(sT1), sr(sI), '10')
        a('s_lshl_b32', sr(sT2), sr(sM), '8')
        a('s_add_u32', sr(sT1), sr(sT1), sr(sT2))
        a('s_add_u32', sr(sT1), sr(sT1), hex(STAT_OFF))
        a('buffer_load_dwordx2', vr(T, 2), vr(T + 4), sr(S_H, 4), sr(sT1), mods='offen sc1')
        a('v_lshrrev_b32', vr(T + 5), '2', vr(vL16))
        a('s_mul_i32', sr(sT1), sr(sJ), str(16 * 1280))
        a('s_add_u32', sr(sT1), sr(sT1), hex(CSP_OFF))
        a('s_mul_i32', sr(sT2), sr(sM), str(4 * 1280))
        a('s_add_u32', sr(sT2), sr(sT2), sr(sT1))
        a('s_add_u32', sr(sT2), sr(sT2), '1024')
        for i in range(3):
            a('buffer_load_dword', vr(vP + i), vr(T + 5), sr(S_H, 4), sr(sT2), mods='offen offset:%d sc1' % (i * 1280))
        a('s_add_u32', sr(sT2), sr(sT2), '3840')
        a('buffer_load_dword', vr(vP + 3), vr(T + 5), sr(S_H, 4), sr(sT2), mods='offen sc1')
        a('s_lshl_b32', sr(sT2), sr(sM), '8')
        a('s_add_u32', sr(sT1), sr(sT1), sr(sT2))
        for i in range(16):
            a('buffer_load_dword', vr(s.greg(i)), vr(T + 5), sr(S_H, 4), sr(sT1), mods='offen offset:%d sc1' % ((i % 3) * 1280))
            if i % 3 == 2: a('s_add_u32', sr(sT1), sr(sT1), str(3 * 1280))

    def gather_finish(s):
        ops = []
        o = lambda mn, *x, **k: ops.append(mkop(mn, *x, **k))
        T = vTA
        o('v_add_f32', vr(vP), vr(vP), vr(vP + 1)); o('v_add_f32', vr(vP + 2), vr(vP + 2), vr(vP + 3))
        o('v_add_f32', vr(vP), vr(vP), vr(vP + 2))
        o('s_lshl_b32', sr(sF0), sr(sM), '2')
        o('s_add_u32', sr(sF0), sr(sF0), hex(CT4))
        o('v_add_u32', vr(T + 6), sr(sF0), vr(vL16))
        o('ds_write_b32', vr(T + 6), vr(vP))
        g = s.greg
        for st in (1, 2, 4, 8):
            for i in range(0, 16, 2 * st): o('v_add_f32', vr(g(i)), vr(g(i)), vr(g(i + st)))
        o('s_lshl_b32', sr(sF0), sr(sM), '8')
        o('s_add_u32', sr(sF0), sr(sF0), hex(CTB))
        o('v_add_u32', vr(T + 6), sr(sF0), vr(T + 5))
        o('ds_write_b32', vr(T + 6), vr(g(0)))
        o('s_lshl_b32', sr(sF0), sr(sM), '8')
        o('s_add_u32', sr(sF0), sr(sF0), hex(STB))
        o('v_add_u32', vr(T + 6), sr(sF0), vr(T + 4))
        o('ds_write_b64', vr(T + 6), vr(T, 2))
        if s.typ == 'O':
            o('v_rcp_f32', vr(T + 2), vr(T + 1))
            o('v_lshrrev_b32', vr(T + 4), '1', vr(T + 4))
            o('s_lshl_b32', sr(sF0), sr(sM), '7')
            o('s_add_u32', sr(sF0), sr(sF0), hex(RSB))
            o('v_add_u32', vr(T + 4), sr(sF0), vr(T + 4))
            o('ds_write_b32', vr(T + 4), vr(T + 2))
        return ops

    def stats_consts(s):
        ops = []
        o = lambda mn, *x, **k: ops.append(mkop(mn, *x, **k))
        A = vTA
        o('v_and_b32', vr(A + 4), '0x1f0', vr(vL16))
        o('v_lshrrev_b32', vr(A + 4), '1', vr(A + 4))
        o('s_lshl_b32', sr(sF0), sr(sM), '8')
        o('s_add_u32', sr(sF0), sr(sF0), hex(STB))
        o('v_add_u32', vr(A + 4), sr(sF0), vr(A + 4))
        o('ds_read_b64', vr(A, 2), vr(A + 4))
        ops += [None] * 3
        o('v_sub_f32', vr(A + 2), '0', vr(A))
        o('v_cvt_pk_bf16_f32', vr(A + 2), vr(A + 2), vr(A + 2))
        o('v_cmp_gt_u32', 'vcc', '512', vr(vL16))
        o('v_mov_b32', vr(A + 3), '0')
        o('v_cndmask_b32', vr(vXE), vr(A + 3), vr(A + 2))
        o('v_rcp_f32', vr(A + 5), vr(A + 1))
        o('v_mul_f32', vr(vCC), vr(A + 1), vr(A + 1))
        o('v_mul_f32', vr(vK0), lit(K0), vr(A + 5))
        o('v_mul_f32', vr(A + 6), vr(A + 5), vr(A + 5))
        o('v_mul_f32', vr(A + 6), vr(A + 6), vr(A + 5))
        o('v_mul_f32', vr(vK1), lit(K1C), vr(A + 6))
        if s.typ == 'E': o('v_mov_b32', vr(vRS), vr(A + 5))
        return ops

    def ext_ops(s, r):
        ops = []
        o = lambda mn, *x, **k: ops.append(mkop(mn, *x, **k))
        segs = s.SEGS[s.typ][r]
        T = vT4
        for u, sg in enumerate(segs):
            if sg < 4:
                o('v_and_b32', vr(T), '0x1f0', vr(vL16))
                o('v_lshrrev_b32', vr(T), '2', vr(T))
                o('v_add_u32', vr(T), sr(sCT), vr(T))
                o('ds_read_b32', vr(T + 1), vr(T), mods='offset:%d' % (sg * 256))
                ops.extend([None] * 3)
            else:
                o('v_and_b32', vr(T), '0x1f0', vr(vL16))
                o('s_lshl_b32', sr(sF0), sr(sC), '9')
                o('v_add_u32', vr(T), sr(sF0), vr(T))
                o('v_add_u32', vr(T), hex(CT4), vr(T))
                o('ds_read_b128', vr(vP + 4, 4), vr(T))
                ops.extend([None] * 3)
                o('v_add_f32', vr(vP + 4), vr(vP + 4), vr(vP + 5)); o('v_add_f32', vr(vP + 6), vr(vP + 6), vr(vP + 7))
                o('v_add_f32', vr(T + 1), vr(vP + 4), vr(vP + 6))
            Q = T + 1
            o('v_cvt_pk_bf16_f32', vr(T + 3), vr(Q), vr(Q))
            o('v_lshlrev_b32', vr(T + 3), '16', vr(T + 3))
            o('v_sub_f32', vr(T + 3), vr(Q), vr(T + 3))
            o('v_cvt_pk_bf16_f32', vr(vWE), vr(Q), vr(T + 3))
            ops.append(None)
            Dd = acc(r % 2, u)
            if s.rounds[r] == 'KV': o(MF8, vr(Dd, 16), vr(vXE, 2), vr(vWE, 2), vr(Dd, 16))
            else: o(MF8, vr(Dd, 16), vr(vWE, 2), vr(vXE, 2), vr(Dd, 16))
        ops += [None] * 3
        return ops

    def kv_atomics(s):
        a = s.a
        t = acc(1, 1) if P('ORDO', 1) else acc(0, 1)
        a('s_lshl_b32', sr(sT1), sr(sM), '11')
        a('v_add_u32', vr(vTA), sr(sT1), vr(vL16))
        a('v_add_u32', vr(vTA), hex(KVL), vr(vTA))
        a('v_lshrrev_b32', vr(vTA + 1), '2', vr(vL16))
        for h in range(2):
            for m in range(4):
                a('ds_read_b128', vr(t + 4 * m, 4), vr(vTA), mods='offset:%d' % (m * 8192 + h * 1024))
            for i in range(4): a('v_add_f32', vr(t + i), vr(t + i), vr(t + 4 + i))
            for i in range(4): a('v_add_f32', vr(t + 8 + i), vr(t + 8 + i), vr(t + 12 + i))
            for i in range(4): a('v_add_f32', vr(t + i), vr(t + i), vr(t + 8 + i))
            a('s_lshl_b32', sr(sT1), sr(sM), '11')
            a('s_add_u32', sr(sT1), sr(sT1), sr(sAcc))
            for r in range(4):
                a('buffer_atomic_add_f32', vr(t + r), vr(vTA + 1), sr(S_H, 4), sr(sT1), mods='offen offset:%d' % (h * 1024 + r * 256), tag='kvat' if (r == 3 and h == 1) else None)

    def main(s):
        a = s.a; typ = s.typ; S = s.role == 'S'
        a.label('L_k1_' + s.name)
        a.nop(1)
        if S: s.setup_S()
        else: s.setup_D()
        a.stamp(2)
        steps = [(r, kk) for r in range(3) for kk in range(32)]
        issue_at = {}
        for n, (r, kk) in enumerate(steps):
            t = n - 2 if (s.pair(r) and kk >= 1) else n - 1
            issue_at.setdefault(t, []).append(n)
        bar_after = {}
        for n, (r, kk) in enumerate(steps):
            per = 8 if s.pair(r) else 4
            if kk % per == 0:
                t_issue = [t for t, l in issue_at.items() if n in l][0]
                bar_after.setdefault(t_issue - 1, []).append(s.wst[(r, kk // per)])
        def do_reads(t, u, units):
            for n in issue_at.get(t, []):
                r2, kk2 = steps[n]
                u2n = 1 if s.pair(r2) else 2
                if s.rounds[r2] == 'P2' and kk2 == 0 and u == 0:
                    tb = vP + 4 if r2 == 1 else vG
                    s.lq_bases('P2', [tb, tb + 1, tb + 2, tb + 3])
                if r2 > 0 and s.rounds[r2 - 1] == 'P2' and kk2 == 0 and u == 0:
                    s.lq_bases('Q', [vG, vG + 1, vG + 2, vG + 3])
                if units == 2 and u2n == 2:
                    s.wread(r2, kk2, only_u=u, xpart=(u == 0))
                elif u == units - 1:
                    s.wread(r2, kk2)
        cand = sorted(n for n in bar_after if n >= 32 + P('NSTAR', 5 if typ == 'E' else 10))
        s.nstar = cand[0]
        events = {}
        if S:
            sA = [(S_DBG, sArow, vTA + 6), (S_DBG, sAcol, vTA + 7)]
            def arrive():
                if 'chain' in EXP: a.lstamp(1)
                s.lead_spin('a', [(S_DBG, sArow, 1, vTA + 6), (S_DBG, sAcol, 1, vTA + 7)])
                s.signal([sRowCnt, sColCnt], vT4, vT4 + 1)
            def pre_done():
                if 'chain' in EXP: a.lstamp(0)
                a.stamp(45)
                s.lead_poll(sA)
                def nxt():
                    s.prebar.append(lambda: a.wait_tag('pub'))
                    s.postbar.append(arrive)
                s.postbar.append(nxt)
            if P('PLD', 1) == 0: s.pre_loads()
            else: s.postbar.append(s.pre_loads)
            s.postbar.append(lambda: s.prebar.append(s.late2))
            s.fq += [lambda: s.more_code_pf(3)]
            if P('SPF', 1): s.fq += [('UNTIL', P('SPF1', 3)), lambda: s.spf_phase(1)]
            s.fq += [('UNTIL', P('PRE0', 7))] + group_flags(s.row_stats_ops()) + group_flags(s.cs_slice_ops(1)) + group_flags(s.cs_slice_ops(2))
            s.fq.append(pre_done)
            if typ == 'O':
                s.prebar.append(lambda: a.wait_tag('zkv'))
                s.postbar.append(s.announce_kv)
            e1, e2, e3 = P('EV1', 24), P('EV2', 28), P('EV3', 31)
            events[divmod(e1, 32)] = lambda: s.lead_poll([(S_H, sRowCnt, vTA + 6), (S_H, sColCnt, vTA + 7)])
            events[divmod(e2, 32)] = lambda: (a.stamp(46), a.lstamp(2) if 'chain' in EXP else None, s.lead_spin('b', [(S_H, sRowCnt, 16, vTA + 6), (S_H, sColCnt, 16, vTA + 7)]), s.set_flag(vTA + 7, vTA + 6, 0), a.stamp(47), a.lstamp(3) if 'chain' in EXP else None)
            def do_gather():
                s.check_all('b', vTA + 7, vTA + 6, 0)
                s.gather_loads()
                s.fq[0:0] = [('UNTIL', s.cur + P('GD', 5))] + group_flags(s.gather_finish()) + [('MARK',)]
            events[divmod(e3, 32)] = do_gather
            if typ == 'E':
                events[(2, 14)] = lambda: s.lead_poll([(S_H, sDoneC, vTA + 7)])
                events[(2, 20)] = lambda: (s.lead_spin('d', [(S_H, sDoneC, 16, vTA + 7)]), s.set_flag(vTA + 7, vTA + 6, 1))
        if typ == 'E':
            events[(2, 30)] = lambda: (s.check_all('d', vTA + 7, vTA + 6, 1), s.o_loads())
        for st in bar_after.get(-2, []):
            s.bar(st); a.stamp(16); a.lstamp(0 if 'startup' not in EXP else 3) if 'chain' not in EXP else None
        do_reads(-1, 0, 1)
        for n, (r, kk) in enumerate(steps):
            rn = s.rounds[r]
            units = 1 if s.pair(r) else 2
            s.cur = n
            if (r, kk) in events and 'noev' not in EXP: events[(r, kk)]()
            setn = r % 2
            nf = s.fillrate(r, kk, units)
            for u in range(units):
                Dd = acc(setn, u)
                C = '0' if kk == 0 else vr(Dd, 16)
                wf = vr(s.wbuf(r, kk, u), 4)
                if rn == 'KV': a(MF, vr(Dd, 16), vr(xfr(kk), 4), wf, C)
                else: a(MF, vr(Dd, 16), wf, vr(xfr(kk), 4), C)
                do_reads(n, u, units)
                if r == 0 or u == units - 1:
                    if units == 2 or kk % 2 == 0 or len(s.dq) > 1: s.dma_half()
                s.fill(nf)
            s.nstep = n
            if n == s.nstar:
                assert n in bar_after
                if S and 'noev' not in EXP:
                    while not (isinstance(s.fq[0], tuple) and s.fq[0][0] == 'MARK'):
                        if isinstance(s.fq[0], tuple) and s.fq[0][0] == 'UNTIL': s.fq.pop(0)
                        else: s.fill(1)
                    s.fq.pop(0)
            for st in bar_after.get(n, []): s.bar(st)
            if kk == 31 and not (r == 0):
                s.flush()
                a.stamp(4 + r)
                if 'startup' not in EXP and 'chain' not in EXP: a.lstamp(1 + r)
                if r == 1 and typ == 'O': s._kv_after()
                s.push_epilogue(r)
            elif kk == 31:
                if 'startup' not in EXP and 'chain' not in EXP: a.lstamp(1)
                if 'chain' in EXP and not S: a.lstamp(3)
                s.push_epilogue(0)
        s.flush()
        a.stamp(7)
        if getattr(a, 'stamps', False): a.raw('  s_waitcnt vmcnt(0)')
        a.stamp(8)
        a.stamp(9, real=True)
        a.lstamp_collect(0)
        a.stamp_out(22, 's2', sr(sW), 0xA00000, vreg=0, tmpv=vT4, tmps=sT1)
        a.raw('  s_endpgm')

    def fill(s, n):
        k = 0
        while k < n and s.fq:
            op = s.fq[0]
            if isinstance(op, tuple):
                if op[0] == 'MARK': return
                if op[0] == 'UNTIL':
                    if s.cur < op[1]: return
                    s.fq.pop(0); continue
                if op[0] == 'G':
                    s.fq.pop(0)
                    for o2 in op[1]: s.a.emit(o2)
                    k += len(op[1]); continue
            s.fq.pop(0)
            if callable(op): op()
            elif op is None: k += 1
            else:
                if 'nofill' in EXP and s.cur >= 32 and op.kind in ('valu', 'trans'): continue
                s.a.emit(op); k += 1

    def flush(s):
        while s.fq:
            op = s.fq[0]
            if isinstance(op, tuple) and op[0] in ('UNTIL', 'MARK'):
                s.fq.pop(0); continue
            s.fill(1)

    def fillrate(s, r, kk, units):
        if r == 0: return P('F0', 12)
        if units == 1: return P('FP', 6)
        return P('FQ', 4)

    def push_epilogue(s, r):
        rn = s.rounds[r]; setn = r % 2
        a = s.a; q = s.fq; S = s.role == 'S'
        if r == 0:
            q.append(('UNTIL', s.nstar + 1))
            q += group_flags(s.stats_consts())
        q += s.ext_ops(r)
        if rn in ('GU0', 'GU1'):
            hreg = sHq if rn == 'GU0' else sHq2
            q += s.ep_geglu(acc(setn, 0), acc(setn, 1), 16, hreg, [0, 1024])
        elif rn == 'P2':
            q += s.ep_geglu(acc(setn, 0), acc(setn, 0) + 8, 8, sHq2, [0])
        elif rn == 'QP':
            q += s.phi_ops(acc(setn, 0), 16, lambda i: vRS)
            q += [x for x in s.o_ops() if not (isinstance(x, str) and x == 'GAP')]
        elif rn == 'KV':
            q += s.ep_kv(setn)

    def _kv_after(s):
        a = s.a; S = s.role == 'S'
        def after():
            if not S: return
            a('s_lshl_b32', sr(sW0b), sr(sP), '2')
            a('s_add_u32', sr(sW0b), sr(sW0b), '192')
            s.poll(S_DBG, sW0b, vTA + 7)
            def post1():
                s.all_spin('z' + s.role, S_DBG, sW0b, 1, vTA + 7)
                s.kv_atomics()
                def arm():
                    s.prebar.append(lambda: a.wait_tag('kvat'))
                    s.postbar.append(lambda: (a.stamp(13), s.signal([sDoneC], vTA + 3, vTA + 4)))
                s.postbar.append(arm)
            s.postbar.append(post1)
        after()
```

```python
from asmfw import *
from k1 import lit, LOG2E, H_BYTES, SLOT, P, EXP

D2 = 10
NST = 36
S_H, S_WD, S_WO, S_X, S_O = 24, 28, 32, 36, 40
sW, sRB, sCT, sA, sMa, sMb, sBo = 48, 49, 50, 51, 52, 53, 54
sT0, sT1, sT2, sT3 = 60, 61, 62, 63
vLane = 1
vA = 2
vB = 5
vO = 8
vT = 10
vXr = 32
vF = 40
vAcc1 = 72
vAcc2 = 88

K1_sI, K1_sJ, K1_sRowCnt = 51, 83, 86
WS_BYTES = 0x980000

def k2_gen(stamps=False, fused=False):
    a = Asm()
    a.stamps = stamps
    if fused: return k2_body(a, stamps, True)
    a.raw('  s_cmp_ge_u32 s2, 256')
    a.raw('  s_cbranch_scc1 L_k2_exit')
    if stamps:
        a.raw('  s_memtime s[96:97]')
        a.raw('  s_memrealtime s[98:99]')
    a.raw('  s_load_dwordx16 s[4:19], s[0:1], 0')
    a.raw('  s_load_dwordx4 s[20:23], s[0:1], 64')
    a('v_and_b32', vr(vLane), '63', 'v0')
    a('v_lshrrev_b32', vr(vT), '6', 'v0')
    a('v_readfirstlane_b32', sr(sW), vr(vT))
    a('s_and_b32', sr(sT0), 's2', '7')
    a('s_lshr_b32', sr(sT1), 's2', '3')
    if P('K2MAP', 0) == 0:
        a('s_lshr_b32', sr(sT2), sr(sT0), '1')
        a('s_and_b32', sr(sT3), sr(sT0), '1')
        a('s_lshl_b32', sr(sRB), sr(sT2), '3')
        a('s_and_b32', sr(sT2), sr(sT1), '7')
        a('s_add_u32', sr(sRB), sr(sRB), sr(sT2))
        a('s_lshl_b32', sr(sCT), sr(sT3), '2')
        a('s_lshr_b32', sr(sT1), sr(sT1), '3')
        a('s_add_u32', sr(sCT), sr(sCT), sr(sT1))
    else:
        a('s_lshl_b32', sr(sRB), sr(sT0), '2')
        a('s_and_b32', sr(sT2), sr(sT1), '3')
        a('s_add_u32', sr(sRB), sr(sRB), sr(sT2))
        a('s_lshr_b32', sr(sCT), sr(sT1), '2')
    return k2_body(a, stamps, False)

def k2_body(a, stamps, fused):
    if fused:
        a.label('L_k2f')
        a.raw('  s_load_dwordx16 s[4:19], s[0:1], 0')
        a.raw('  s_load_dwordx4 s[20:23], s[0:1], 64')
        if stamps:
            a.raw('  s_memtime s[96:97]')
            a.raw('  s_memrealtime s[98:99]')
        a('v_lshrrev_b32', vr(vLane), '4', vr(vLane))
        a('s_lshr_b32', sr(sT0), sr(K1_sJ), '3')
        a('s_lshl_b32', sr(sT0), sr(sT0), '2')
        a('s_and_b32', sr(sT1), sr(K1_sJ), '3')
        a('s_add_u32', sr(sCT), sr(sT0), sr(sT1))
        a('s_lshr_b32', sr(sT0), sr(K1_sJ), '2')
        a('s_and_b32', sr(sT0), sr(sT0), '1')
        a('s_lshl_b32', sr(sT1), sr(K1_sI), '1')
        a('s_add_u32', sr(sRB), sr(sT1), sr(sT0))
    a('s_cmp_ge_u32', sr(sW), '4')
    a.raw('  s_cbranch_scc1 L_k2_loader'); a.pos += 1
    ld = a.fork()

    def srd(x, d, lo, size):
        x('s_mov_b32', sr(d), sr(lo)); x('s_mov_b32', sr(d + 1), sr(lo + 1))
        x('s_mov_b32', sr(d + 2), hex(size)); x('s_mov_b32', sr(d + 3), '0x20000')

    t = vT
    a('s_and_b32', sr(sT0), sr(sW), '1')
    a('s_lshr_b32', sr(sT1), sr(sW), '1')
    a('v_lshlrev_b32', vr(vA), '4', vr(vLane))
    a('s_lshl_b32', sr(sT2), sr(sT0), '12')
    a('v_add_u32', vr(vA), sr(sT2), vr(vA))
    a('v_add_u32', vr(vA + 1), '0x10000', vr(vA))
    a('v_add_u32', vr(vA + 2), '0x20000', vr(vA))
    a('v_lshrrev_b32', vr(t), '5', vr(vLane))
    a('v_lshlrev_b32', vr(t), '2', vr(t))
    a('v_bfe_u32', vr(t + 1), vr(vLane), '2', '2')
    a('v_add_u32', vr(t), vr(t), vr(t + 1))
    a('v_bfe_u32', vr(t + 2), vr(vLane), '4', '1')
    a('v_bfe_u32', vr(t + 3), vr(vLane), '1', '1')
    a('v_and_b32', vr(t + 4), '1', vr(vLane))
    a('v_lshlrev_b32', vr(t + 4), '3', vr(t + 4))
    a('v_lshl_add_u32', vr(t + 5), vr(t + 2), '1', vr(t + 3))
    a('s_lshl_b32', sr(sT2), sr(sT1), '2')
    a('v_add_u32', vr(t + 5), sr(sT2), vr(t + 5))
    a('v_bfe_u32', vr(t + 6), vr(vLane), '3', '1')
    a('v_lshlrev_b32', vr(t + 6), '2', vr(t + 6))
    a('v_xor_b32', vr(t + 5), vr(t + 5), vr(t + 6))
    a('v_lshlrev_b32', vr(t + 5), '4', vr(t + 5))
    a('v_lshl_add_u32', vr(vB), vr(t), '7', vr(t + 5))
    a('v_add_u32', vr(vB), vr(vB), vr(t + 4))
    a('v_add_u32', vr(vB), '0x2000', vr(vB))
    a('v_add_u32', vr(vB + 1), '0x10000', vr(vB))
    a('v_add_u32', vr(vB + 2), '0x20000', vr(vB))
    a('s_lshl_b32', sr(sT2), sr(sRB), '6')
    a('s_lshl_b32', sr(sT3), sr(sT0), '5')
    a('s_add_u32', sr(sT2), sr(sT2), sr(sT3))
    a('v_and_b32', vr(t), '31', vr(vLane))
    a('v_add_u32', vr(t), sr(sT2), vr(t))
    a('v_lshlrev_b32', vr(vO), '10', vr(t))
    a('s_lshl_b32', sr(sT2), sr(sCT), '7')
    a('s_lshl_b32', sr(sT3), sr(sT1), '6')
    a('s_add_u32', sr(sT2), sr(sT2), sr(sT3))
    a('v_lshrrev_b32', vr(t), '5', vr(vLane))
    a('v_lshlrev_b32', vr(t), '3', vr(t))
    a('v_add_u32', vr(t), sr(sT2), vr(t))
    a('v_add_u32', vr(vO), vr(vO), vr(t))
    a.raw('  s_waitcnt lgkmcnt(0)'); a.pos += 1
    srd(a, S_X, 4, 2048 * 1024)
    srd(a, S_O, 18, 2048 * 1024)
    for g in range(4):
        a('buffer_load_dwordx2', vr(vXr + 2 * g, 2), vr(vO), sr(S_X, 4), '0', mods='offen offset:%d' % (g * 16))
    if stamps:
        a.raw('  v_writelane_b32 v0, s96, 0')
        a.raw('  v_writelane_b32 v0, s98, 1')
    a.stamp(2)
    nsteps = NST * 4
    stage_reads = {}
    freed_at = []
    freed = 0
    def reads(n):
        st, q = n // 4, n % 4
        so = (st % D2) * SLOT
        win, so = so >> 16, so & 0xffff
        f = vF + (n % 4) * 8
        a('ds_read_b128', vr(f, 4), vr(vA + win), mods='offset:%d' % (so + q * 1024))
        stage_reads.setdefault(st, []).append(a.lg_issued - 1)
        for qq in range(2):
            a('ds_read_b64_tr_b16', vr(f + 4 + 2 * qq, 2), vr(vB + win), mods='offset:%d' % (so + q * 2048 + qq * 1024))
            stage_reads[st].append(a.lg_issued - 1)
    def bar(st):
        nonlocal freed
        while freed < st and len(stage_reads.get(freed, [])) == 12 and all(i < a.lg_retired for i in stage_reads[freed]):
            freed += 1
        a.barrier()
        if st in (0, 1, 2, 4, 8, 16, 24, 28, 35): a.stamp(16 + st)
        freed_at.append(freed)
    DIST = 2
    for n in range(-DIST, nsteps):
        m = n + DIST
        if m < nsteps:
            if m % 4 == 0: bar(m // 4)
            reads(m)
        if n >= 0:
            f = vF + (n % 4) * 8
            Dd = vAcc1 if n < 112 else vAcc2
            C = '0' if n in (0, 112) else vr(Dd, 16)
            a('v_mfma_f32_32x32x16_bf16', vr(Dd, 16), vr(f + 4, 4), vr(f, 4), C)
    a.stamp(3)
    T = vT
    for b in range(4):
        r = [4 * b + i for i in range(4)]
        for i in range(4): a('v_mul_f32', vr(T + i), lit(-LOG2E), vr(vAcc1 + r[i]))
        for i in range(4): a('v_exp_f32', vr(T + i), vr(T + i))
        for i in range(4): a('v_mul_f32', vr(vAcc2 + r[i]), vr(vAcc2 + r[i]), vr(vAcc1 + r[i]))
        for i in range(4): a('v_add_f32', vr(T + i), '1.0', vr(T + i))
        for i in range(4): a('v_rcp_f32', vr(T + i), vr(T + i))
        a('v_lshlrev_b32', vr(T + 4), '16', vr(vXr + 2 * b))
        a('v_and_b32', vr(T + 5), '0xffff0000', vr(vXr + 2 * b))
        a('v_lshlrev_b32', vr(T + 6), '16', vr(vXr + 2 * b + 1))
        a('v_and_b32', vr(T + 7), '0xffff0000', vr(vXr + 2 * b + 1))
        for i in range(4): a('v_fma_f32', vr(T + 4 + i), vr(vAcc2 + r[i]), vr(T + i), vr(T + 4 + i))
        a('v_cvt_pk_bf16_f32', vr(T + 8 + 2 * b), vr(T + 4), vr(T + 5))
        a('v_cvt_pk_bf16_f32', vr(T + 9 + 2 * b), vr(T + 6), vr(T + 7))
        a('buffer_store_dwordx2', vr(T + 8 + 2 * b, 2), vr(vO), sr(S_O, 4), '0', mods='offen offset:%d%s' % (b * 16, {0: '', 1: ' sc1', 2: ' nt', 3: ' sc0 sc1'}[P('K2ST', 0)]))
    a.stamp(7)
    if stamps:
        a.raw('  s_waitcnt vmcnt(0)')
    a.stamp(8)
    a.stamp(9, real=True)
    a.stamp_out(22, 's2', sr(sW), 0xB00000)
    a.raw('  s_endpgm')

    l = ld
    l.label('L_k2_loader')
    l.nop(2)
    t = vT
    l('s_sub_u32', sr(sW), sr(sW), '4')
    l('s_and_b32', sr(sT0), sr(sW), '1')
    l('s_lshr_b32', sr(sT1), sr(sW), '1')
    l('s_lshl_b32', sr(sT2), sr(sRB), '1')
    l('s_add_u32', sr(sT2), sr(sT2), sr(sT0))
    l('s_mul_i32', sr(sT2), sr(sT2), '144')
    l('s_lshl_b32', sr(sT3), sr(sT1), '1')
    l('s_add_u32', sr(sT2), sr(sT2), sr(sT3))
    l('s_lshl_b32', sr(sA), sr(sT2), '10')
    l('s_lshl_b32', sr(sT2), sr(sT0), '2')
    l('s_add_u32', sr(sT2), sr(sT2), sr(sT3))
    l('s_lshl_b32', sr(sMa), sr(sT2), '10')
    l('s_lshl_b32', sr(sMb), sr(sW), '11')
    l('s_add_u32', sr(sMb), sr(sMb), '8192')
    l('s_lshl_b32', sr(sBo), sr(sCT), '7')
    l('v_lshlrev_b32', vr(vA), '4', vr(vLane))
    l('v_lshrrev_b32', vr(t), '3', vr(vLane))
    l('s_lshl_b32', sr(sT2), sr(sW), '4')
    l('v_add_u32', vr(t), sr(sT2), vr(t))
    l('v_lshlrev_b32', vr(t), '10', vr(t))
    l('v_and_b32', vr(t + 1), '7', vr(vLane))
    l('v_lshrrev_b32', vr(t + 2), '2', vr(vLane))
    l('v_and_b32', vr(t + 2), '4', vr(t + 2))
    l('v_xor_b32', vr(t + 1), vr(t + 1), vr(t + 2))
    l('v_lshl_add_u32', vr(vB), vr(t + 1), '4', vr(t))
    l.raw('  s_waitcnt lgkmcnt(0)'); l.pos += 1
    srd(l, S_H, 22, WS_BYTES)
    srd(l, S_WD, 16, 1792 * 1024)
    srd(l, S_WO, 8, 512 * 1024)
    def dmaB(st):
        base = (st % D2) * SLOT
        for e in range(2):
            l('s_add_u32', 'm0', sr(sMb), str(base + e * 1024))
            if st < 28:
                l('s_add_u32', sr(sT0), sr(sBo), str(st * 65536 + e * 8192))
                l('buffer_load_dwordx4', vr(vB), sr(S_WD, 4), sr(sT0), mods='offen lds')
            else:
                l('s_add_u32', sr(sT0), sr(sBo), str((st - 28) * 65536 + e * 8192))
                l('buffer_load_dwordx4', vr(vB), sr(S_WO, 4), sr(sT0), mods='offen lds')
    def dmaA(st):
        base = (st % D2) * SLOT
        for e in range(2):
            l('s_add_u32', 'm0', sr(sMa), str(base + e * 1024))
            l('s_add_u32', sr(sT0), sr(sA), str(st * 4096 + e * 1024))
            l('buffer_load_dwordx4', vr(vA), sr(S_H, 4), sr(sT0), mods='offen lds', tag=('dma', st) if e == 1 else None)
    def dma(st):
        dmaB(st); dmaA(st)
    if stamps:
        l.raw('  v_writelane_b32 v0, s96, 0')
        l.raw('  v_writelane_b32 v0, s98, 1')
    l.stamp(2)
    issued = 0
    AH = P('K2AH', 4)
    if fused:
        n0 = P('K2INIT', 3)
        nB = P('K2NB', 9)
        for st in range(nB): dmaB(st)
        l.raw('  s_mov_b32 s82, 0')
        l.label('L_k2f_spin')
        l.raw('  buffer_load_dword v%d, off, s[%d:%d], s%d sc1' % (vT, S_H, S_H + 3, K1_sRowCnt))
        l.raw('  s_waitcnt vmcnt(0)')
        l.raw('  v_readfirstlane_b32 s%d, v%d' % (sT2, vT))
        l.raw('  s_add_u32 s82, s82, 1')
        l.raw('  s_cmp_ge_u32 s%d, 16' % sT2)
        l.raw('  s_cbranch_scc1 L_k2f_go')
        l.raw('  s_cmp_ge_u32 s82, 0x200000')
        l.raw('  s_cbranch_scc1 L_k2f_go')
        l.raw('  s_sleep 3')
        l.raw('  s_branch L_k2f_spin')
        l.label('L_k2f_go')
        l.vm_retired = l.vm_issued
        l.nop(2)
        for st in range(n0): dmaA(st)
        issued = n0
    while issued < P('K2INIT', 3):
        dma(issued); issued += 1
        if issued in (1, 2): l.stamp(2 + issued)
    l.stamp(10)
    issuedB = nB if fused else issued
    for st in range(NST):
        l.wait_tag(('dma', st))
        if st in (0, 1, 2, 3, 4, 8): l.stamp(16 + st)
        l.barrier()
        k = 0
        while issued < NST and issued - D2 < freed_at[st] and issued - (st + 1) < AH and k < 2:
            if issuedB <= issued:
                dmaB(issued); issuedB = issued + 1
            dmaA(issued); issued += 1; k += 1
        if fused and issuedB < NST and issuedB - D2 < freed_at[st] and issuedB - issued < P('K2BA', 2):
            dmaB(issuedB); issuedB += 1
    l.stamp(9, real=True)
    l.stamp_out(22, 's2', sr(sW), 0xB00000 + 1024)
    l.raw('  s_endpgm')
    return a, l
```

```python
import sys
from asmfw import *
import k1, k2, k1b, os

def kd(name, vg, sg):
    return f""".section .rodata,"a"
.p2align 6
.amdhsa_kernel {name}
  .amdhsa_next_free_vgpr {vg}
  .amdhsa_next_free_sgpr {sg}
  .amdhsa_accum_offset {vg}
  .amdhsa_group_segment_fixed_size 0
  .amdhsa_kernarg_size 80
  .amdhsa_user_sgpr_count 2
  .amdhsa_user_sgpr_kernarg_segment_ptr 1
  .amdhsa_system_sgpr_workgroup_id_x 1
.end_amdhsa_kernel
"""

HEADER = """; Fused LN + linear-attention + GEGLU FFN block for gfx950 (generated by gen/gen.py; hand-designed schedule)
; k1: LayerNorm + QKV/gate/up GEMM + GEGLU + kv reduction + normalised attention rows -> ws fragments
; k2: [h | o] x [w_down ; wo] dual GEMM + silu gate + residual
; @launch kernel=k1_kernel grid=(256,1,1) block=(512,1,1) lds=163840
; @launch kernel=k2_kernel grid=(256,1,1) block=(512,1,1) lds=163840
.amdgcn_target "amdgcn-amd-amdhsa--gfx950"
.text
"""

def main(out, stamps=False):
    a = Asm()
    a.stamps = stamps
    a.lstamps = 'lstamps' in sys.argv
    if os.environ.get('ROLES', '1') == '1':
        k1b.prologue(a)
        paths = []
        for typ, role in (('E', 'D'), ('E', 'S'), ('O', 'D'), ('O', 'S')):
            p = a.fork(); k1b.K1R(typ, role, p).main(); paths.append(p)
        c, l = k2.k2_gen(stamps or ('k2stamps' in sys.argv))
        txt = HEADER
        if os.environ.get('ONLY') == 'k1':
            txt = txt.replace('; @launch kernel=k2_kernel grid=(256,1,1) block=(512,1,1) lds=163840\n', '')
        txt += ".globl k1_kernel\n.p2align 8\n.type k1_kernel,@function\nk1_kernel:\n"
        txt += a.text() + ''.join(p.text() for p in paths) + "L_k1_exit:\n  s_endpgm\n"
        txt += ".globl k2_kernel\n.p2align 8\n.type k2_kernel,@function\nk2_kernel:\n"
        txt += c.text() + l.text() + "L_k2_exit:\n  s_endpgm\n"
        txt += ".fill 64, 4, 0xBF800000\n.p2alignl 16, 0xBF800000\n.fill 512, 4, 0xBF800000\n"
        txt += kd('k1_kernel', 256, 102) + kd('k2_kernel', 128, 102)
        open(out, 'w').write(txt)
        print('insts: prologue %d paths %s nops %s' % (a.ninst, [p.ninst - a.ninst for p in paths], [p.nops for p in paths]), file=sys.stderr)
        return
    k1.k1_prologue(a, 24576)
    e = a.fork(); o = a.fork()
    e.label('L_k1_E'); e.nop(1)
    k1.K1('E', e).main()
    o.label('L_k1_O'); o.nop(1)
    k1.K1('O', o).main()
    fuse = os.environ.get('FUSE', '0') == '1'
    c, l = k2.k2_gen(stamps or ('k2stamps' in sys.argv), fused=fuse)
    txt = HEADER
    if fuse:
        txt = txt.replace('; @launch kernel=k2_kernel grid=(256,1,1) block=(512,1,1) lds=163840\n', '')
        txt += ".globl k1_kernel\n.p2align 8\n.type k1_kernel,@function\nk1_kernel:\n"
        txt += a.text() + e.text() + o.text() + ".p2align 6\n" + c.text() + l.text() + "L_k1_exit:\n  s_endpgm\n"
        txt += ".fill 64, 4, 0xBF800000\n.p2alignl 16, 0xBF800000\n.fill 512, 4, 0xBF800000\n"
        txt += kd('k1_kernel', 256, 102)
        open(out, 'w').write(txt)
        print('fused', file=sys.stderr)
        return
    if os.environ.get('ONLY') == 'k1':
        txt = txt.replace('; @launch kernel=k2_kernel grid=(256,1,1) block=(512,1,1) lds=163840\n', '')
    if os.environ.get('ONLY') == 'k2':
        txt = txt.replace('; @launch kernel=k1_kernel grid=(256,1,1) block=(512,1,1) lds=163840\n', '')
    txt += ".globl k1_kernel\n.p2align 8\n.type k1_kernel,@function\nk1_kernel:\n"
    txt += a.text() + e.text() + o.text() + "L_k1_exit:\n  s_endpgm\n"
    txt += ".globl k2_kernel\n.p2align 8\n.type k2_kernel,@function\nk2_kernel:\n"
    txt += c.text() + l.text() + "L_k2_exit:\n  s_endpgm\n"
    txt += ".fill 64, 4, 0xBF800000\n.p2alignl 16, 0xBF800000\n.fill 512, 4, 0xBF800000\n"
    txt += kd('k1_kernel', 256, 102) + kd('k2_kernel', 128, 102)
    open(out, 'w').write(txt)
    print('insts: prologue %d E %d O %d | k2 cons %d load %d ; nops: E %d O %d c %d l %d' % (a.ninst, e.ninst - a.ninst, o.ninst - a.ninst, c.ninst, l.ninst, e.nops, o.nops, c.nops, l.nops), file=sys.stderr)

main(sys.argv[1] if len(sys.argv) > 1 else 'out.s', stamps=('stamps' in sys.argv))
```

```python
import sys
from asmfw import *
import k1, k2, k1b, os

def kd(name, vg, sg):
    return f""".section .rodata,"a"
.p2align 6
.amdhsa_kernel {name}
  .amdhsa_next_free_vgpr {vg}
  .amdhsa_next_free_sgpr {sg}
  .amdhsa_accum_offset {vg}
  .amdhsa_group_segment_fixed_size 0
  .amdhsa_kernarg_size 80
  .amdhsa_user_sgpr_count 2
  .amdhsa_user_sgpr_kernarg_segment_ptr 1
  .amdhsa_system_sgpr_workgroup_id_x 1
.end_amdhsa_kernel
"""

HEADER = """; Fused LN + linear-attention + GEGLU FFN block for gfx950 (generated by gen/gen.py; hand-designed schedule)
; k1: LayerNorm + QKV/gate/up GEMM + GEGLU + kv reduction + normalised attention rows -> ws fragments
; k2: [h | o] x [w_down ; wo] dual GEMM + silu gate + residual
; @launch kernel=k1_kernel grid=(256,1,1) block=(512,1,1) lds=163840
; @launch kernel=k2_kernel grid=(256,1,1) block=(512,1,1) lds=163840
.amdgcn_target "amdgcn-amd-amdhsa--gfx950"
.text
"""

def main(out, stamps=False):
    a = Asm()
    a.stamps = stamps
    a.lstamps = 'lstamps' in sys.argv
    if os.environ.get('ROLES', '1') == '1':
        k1b.prologue(a)
        paths = []
        for typ, role in (('E', 'D'), ('E', 'S'), ('O', 'D'), ('O', 'S')):
            p = a.fork(); k1b.K1R(typ, role, p).main(); paths.append(p)
        c, l = k2.k2_gen(stamps or ('k2stamps' in sys.argv))
        txt = HEADER
        if os.environ.get('ONLY') == 'k1':
            txt = txt.replace('; @launch kernel=k2_kernel grid=(256,1,1) block=(512,1,1) lds=163840\n', '')
        txt += ".globl k1_kernel\n.p2align 8\n.type k1_kernel,@function\nk1_kernel:\n"
        txt += a.text() + ''.join(p.text() for p in paths) + "L_k1_exit:\n  s_endpgm\n"
        txt += ".globl k2_kernel\n.p2align 8\n.type k2_kernel,@function\nk2_kernel:\n"
        txt += c.text() + l.text() + "L_k2_exit:\n  s_endpgm\n"
        txt += ".fill 64, 4, 0xBF800000\n.p2alignl 16, 0xBF800000\n.fill 512, 4, 0xBF800000\n"
        txt += kd('k1_kernel', 256, 102) + kd('k2_kernel', 128, 102)
        open(out, 'w').write(txt)
        print('insts: prologue %d paths %s nops %s' % (a.ninst, [p.ninst - a.ninst for p in paths], [p.nops for p in paths]), file=sys.stderr)
        return
    k1.k1_prologue(a, 24576)
    e = a.fork(); o = a.fork()
    e.label('L_k1_E'); e.nop(1)
    k1.K1('E', e).main()
    o.label('L_k1_O'); o.nop(1)
    k1.K1('O', o).main()
    fuse = os.environ.get('FUSE', '0') == '1'
    c, l = k2.k2_gen(stamps or ('k2stamps' in sys.argv), fused=fuse)
    txt = HEADER
    if fuse:
        txt = txt.replace('; @launch kernel=k2_kernel grid=(256,1,1) block=(512,1,1) lds=163840\n', '')
        txt += ".globl k1_kernel\n.p2align 8\n.type k1_kernel,@function\nk1_kernel:\n"
        txt += a.text() + e.text() + o.text() + ".p2align 6\n" + c.text() + l.text() + "L_k1_exit:\n  s_endpgm\n"
        txt += ".fill 64, 4, 0xBF800000\n.p2alignl 16, 0xBF800000\n.fill 512, 4, 0xBF800000\n"
        txt += kd('k1_kernel', 256, 102)
        KN = 'recurrent_scan__linear_attn_block__glu_gated_geglu__prompt_kernel'
        txt = txt.replace('; @launch kernel=k1_kernel grid=(256,1,1) block=(512,1,1) lds=163840', '; @launch grid=(256,1,1) block=(512,1,1) lds=163840')
        txt = txt.replace('k1_kernel', KN)
        txt = txt.replace('; k1: LayerNorm', '; phase 1: LayerNorm').replace('; k2: [h | o]', '; phase 2: [h | o]')
        open(out, 'w').write(txt)
        print('fused', file=sys.stderr)
        return
    if os.environ.get('ONLY') == 'k1':
        txt = txt.replace('; @launch kernel=k2_kernel grid=(256,1,1) block=(512,1,1) lds=163840\n', '')
    if os.environ.get('ONLY') == 'k2':
        txt = txt.replace('; @launch kernel=k1_kernel grid=(256,1,1) block=(512,1,1) lds=163840\n', '')
    txt += ".globl k1_kernel\n.p2align 8\n.type k1_kernel,@function\nk1_kernel:\n"
    txt += a.text() + e.text() + o.text() + "L_k1_exit:\n  s_endpgm\n"
    txt += ".globl k2_kernel\n.p2align 8\n.type k2_kernel,@function\nk2_kernel:\n"
    txt += c.text() + l.text() + "L_k2_exit:\n  s_endpgm\n"
    txt += ".fill 64, 4, 0xBF800000\n.p2alignl 16, 0xBF800000\n.fill 512, 4, 0xBF800000\n"
    txt += kd('k1_kernel', 256, 102) + kd('k2_kernel', 128, 102)
    open(out, 'w').write(txt)
    print('insts: prologue %d E %d O %d | k2 cons %d load %d ; nops: E %d O %d c %d l %d' % (a.ninst, e.ninst - a.ninst, o.ninst - a.ninst, c.ninst, l.ninst, e.nops, o.nops, c.nops, l.nops), file=sys.stderr)

main(sys.argv[1] if len(sys.argv) > 1 else 'out.s', stamps=('stamps' in sys.argv))
```
